```python
import torch

def _softmax(x, axis=-1):
    return torch.softmax(x, dim=axis)
def _gelu(x):
    return torch.nn.functional.gelu(x, approximate="tanh")
def _silu(x):
    return torch.nn.functional.silu(x)
def _sigmoid(x):
    return torch.sigmoid(x)
def _layernorm(x, axis=-1, eps=1e-5):
    m = x.mean(dim=axis, keepdim=True)
    v = x.var(dim=axis, keepdim=True, unbiased=False)
    return (x - m) / torch.sqrt(v + eps)
def _scatter_add(tgt, idx, src, axis=0):
    return tgt.clone().index_add_(axis, idx, src)
def _segment_sum(src, seg, n):
    out = torch.zeros((n,) + src.shape[1:], dtype=src.dtype)
    return out.index_add_(0, seg, src)
def _pad(x, pw):
    flat = tuple(v for pair in reversed(pw) for v in pair)
    return torch.nn.functional.pad(x, flat)

kernel_name = 'sequential_preLN__sliding_block_cached__dense_activation_silu__decode'

def setup_inputs():

    _w = (lambda a: (lambda t: t.to(torch.bfloat16) if t.is_floating_point() else t)(torch.as_tensor(a)))
    def _A_setup():
        B, Sq, D = 8, 1, 640
        Hq, Hkv, Sk, Dh = 32, 32, 4096, 192
        assert Hq % Hkv == 0, (Hq, Hkv)
        return {
            "x": _w((lambda *s: torch.randn(*s, dtype=torch.bfloat16) * 0.05)(B, Sq, D)),
            "k_cache": _w((lambda *s: torch.randn(*s, dtype=torch.bfloat16) * 3.2)(B, Hkv, Sk, Dh)),
            "v_cache": _w((lambda *s: torch.randn(*s, dtype=torch.bfloat16) * 0.8)(B, Hkv, Sk, Dh)),
            "wq": _w((lambda *s: torch.randn(*s, dtype=torch.bfloat16) * 3.2)(D, Hq * Dh) * (D ** -0.5)),
            "wo": _w((lambda *s: torch.randn(*s, dtype=torch.bfloat16) * 0.8)(Hq * Dh, D) * ((Hq * Dh) ** -0.5)),
        }
    _A_in = _A_setup()

    def _B_setup():
        B, S, D, F = 8, 1, 640, 1536
        return {
            "x": _w((lambda *s: torch.randn(*s, dtype=torch.bfloat16) * 0.05)(B, S, D)),
            "w1": _w((lambda *s: torch.randn(*s, dtype=torch.bfloat16) * 3.2)(D, F) * (D ** -0.5)),
            "w2": _w((lambda *s: torch.randn(*s, dtype=torch.bfloat16) * 0.4)(F, D) * (F ** -0.5)),
        }
    _B_in = _B_setup()

    return {
        "A_x": _A_in["x"],
        "A_k_cache": _A_in["k_cache"],
        "A_v_cache": _A_in["v_cache"],
        "A_wq": _A_in["wq"],
        "A_wo": _A_in["wo"],
        "B_x": _B_in["x"],
        "B_w1": _B_in["w1"],
        "B_w2": _B_in["w2"],
    }

def reference(A_x, A_k_cache, A_v_cache, A_wq, A_wo, B_x, B_w1, B_w2):
    def _A_ref(x, k_cache, v_cache, wq, wo):
        B, Sq, D = x.shape
        Hq, Dh = 32, 192
        Hkv, Sk = k_cache.shape[1], k_cache.shape[2]
        W = min(4096, max(256, Sk // 4))
        rep = Hq // Hkv
        q = (lambda x, *d: x.permute(*d))((x @ wq).reshape(B, Sq, Hq, Dh), 0, 2, 1, 3)
        k = (lambda x, n, axis: torch.repeat_interleave(x, n, dim=axis))(k_cache[:, :, Sk - W:, :], rep, axis=1)
        v = (lambda x, n, axis: torch.repeat_interleave(x, n, dim=axis))(v_cache[:, :, Sk - W:, :], rep, axis=1)
        scores = torch.einsum("bhqd,bhkd->bhqk", q, k) * (Dh ** -0.5)
        p = _softmax(scores, axis=-1)
        o = torch.einsum("bhqk,bhkd->bhqd", p, v)
        return (lambda x, *d: x.permute(*d))(o, 0, 2, 1, 3).reshape(B, Sq, Hq * Dh) @ wo

    def _B_ref(x, w1, w2):
        h = torch.einsum("bsd,df->bsf", x, w1)
        h = _silu(h)
        out = torch.einsum("bsf,fd->bsd", h, w2)
        return out

    x = A_x
    h = x + _A_ref(_layernorm(x, axis=-1), A_k_cache, A_v_cache, A_wq, A_wo)
    h2 = h + _B_ref(_layernorm(h, axis=-1), B_w1, B_w2)
    return h2
```

```python
import re

TRANS = ("v_exp_f32", "v_log_f32", "v_rcp_f32", "v_rsq_f32", "v_sqrt_f32", "v_sin_f32", "v_cos_f32")

def regs_of(tok):
    tok = tok.strip()
    tok = tok.lstrip("-")
    if tok.startswith("abs(") or tok.startswith("|"):
        tok = tok.replace("abs(", "").replace(")", "").replace("|", "")
    m = re.fullmatch(r"([vs])(\d+)", tok)
    if m: return {(m.group(1), int(m.group(2)))}
    m = re.fullmatch(r"([vs])\[(\d+):(\d+)\]", tok)
    if m: return {(m.group(1), i) for i in range(int(m.group(2)), int(m.group(3)) + 1)}
    if tok == "vcc": return {("s", "vcc")}
    if tok == "exec": return {("s", "exec")}
    return set()

class Ins:
    def __init__(self, text):
        self.text = text
        t = text.split(";")[0].strip()
        self.label = None; self.op = None
        self.w = set(); self.r = set(); self.kind = "other"; self.srcc = set(); self.srcab = set()
        self.target = None; self.dpp = False; self.sdata = set()
        if t.endswith(":"):
            self.label = t[:-1]; self.kind = "label"; return
        if not t or t.startswith("."):
            self.kind = "dir"; return
        parts = t.split(None, 1)
        op = self.op = parts[0]
        rest = parts[1] if len(parts) > 1 else ""
        ops = [o.strip() for o in re.split(r",(?![^\[]*\])", rest)] if rest else []
        mods = ""
        if ops:
            sp = ops[-1].split(None, 1)
            ops[-1] = sp[0]; mods = sp[1] if len(sp) > 1 else ""
        self.mods = mods
        R = [regs_of(o) for o in ops]
        U = lambda xs: set().union(*xs) if xs else set()
        if op.startswith("v_mfma"):
            self.kind = "mfma"; self.w = R[0]; self.srcab = R[1] | R[2]; self.srcc = R[3]; self.r = U(R[1:])
        elif op.startswith("v_dot"):
            self.kind = "dot"; self.w = R[0]; self.srcab = R[1] | R[2]
            self.srcc = R[3] if len(R) > 3 else R[0]; self.r = self.srcab | self.srcc
        elif op.startswith("v_permlane"):
            self.kind = "valu"; self.w = R[0] | R[1]; self.r = R[0] | R[1]
        elif op.startswith("v_cmp"):
            self.kind = "valu"; self.w = R[0]; self.r = U(R[1:])
        elif op.startswith("v_"):
            self.kind = "valu"; self.w = R[0]; self.r = U(R[1:])
            if op.startswith(("v_fmac", "v_mac")) or "_dpp" in op: self.r |= R[0]
            if op.startswith("v_cndmask") and len(R) == 3: self.r |= {("s", "vcc")}
            self.dpp = "_dpp" in op
            self.dppsrc = R[1] if self.dpp else set()
        elif op.startswith(("buffer_load", "global_load")):
            self.kind = "vmem"
            if " lds" in " " + mods: self.r = U(R)
            else: self.w = R[0]; self.r = U(R[1:])
        elif op.startswith(("buffer_store", "buffer_atomic")):
            self.kind = "vmem"; self.r = U(R)
            if "x3" in op or "x4" in op: self.sdata = R[0]
            if op.startswith("buffer_atomic") and "sc0" in mods: self.w = R[0]
        elif op.startswith("ds_read"):
            self.kind = "ds"; self.w = R[0]; self.r = U(R[1:])
        elif op.startswith("ds_"):
            self.kind = "ds"; self.r = U(R)
        elif op.startswith(("s_branch", "s_cbranch")):
            self.kind = "branch"; self.target = ops[0]
        elif op == "s_nop":
            self.kind = "nop"; self.n = int(ops[0]) + 1
        elif op == "s_endpgm":
            self.kind = "end"
        elif op.startswith("s_"):
            self.kind = "salu"
            if R and not op.startswith(("s_cmp", "s_waitcnt", "s_barrier", "s_sleep", "s_setprio", "s_bitcmp")): self.w = R[0]; self.r = U(R[1:])
            else: self.r = U(R)
    def states(self):
        if self.kind in ("label", "dir"): return 0
        if self.kind == "nop": return self.n
        return 1

def need(p, c):
    n = 0
    vw = {x for x in p.w if x[0] == "v"}; sw = {x for x in p.w if x[0] == "s"}
    isvalu = lambda i: i.kind in ("valu", "dot")
    if p.kind == "valu":
        if c.kind == "valu" and c.dpp and vw & c.r: n = max(n, 2)
        if c.op and c.op.startswith("v_permlane") and vw & c.r: n = max(n, 2)
        if c.op and c.op.startswith(("v_readlane", "v_readfirstlane")) and vw & c.r: n = max(n, 1)
        if c.kind == "mfma" and vw & c.r: n = max(n, 2)
        if p.op.startswith(TRANS) and isvalu(c) and not c.op.startswith(TRANS) and vw & c.r: n = max(n, 1)
        if p.op.startswith(TRANS) and c.kind == "mfma" and vw & c.r: n = max(n, 2)
        if sw:
            if isvalu(c) and sw & c.r: n = max(n, 2)
            if c.op and c.op.startswith(("v_readlane", "v_writelane")) and sw & c.r: n = max(n, 4)
            if c.kind == "vmem" and sw & c.r: n = max(n, 5)
    if p.kind == "dot":
        if c.kind == "dot" and c.op == p.op:
            if vw & c.srcab: n = max(n, 3)
        elif (isvalu(c) or c.kind in ("mfma", "vmem", "ds")) and vw & (c.r | c.w): n = max(n, 3)
    if p.kind == "mfma":
        assert "16x16x32" in p.op
        if c.kind == "mfma":
            if vw & c.srcab: n = max(n, 8)
            if vw & c.srcc and vw != c.srcc: n = max(n, 6)
            if vw & c.w and vw != c.srcc: n = max(n, 6)
        elif isvalu(c) or c.kind in ("vmem", "ds"):
            if vw & (c.r | c.w): n = max(n, 8)
            if isvalu(c) and p.srcc & c.w: n = max(n, 3)
    if p.kind == "vmem" and p.sdata:
        if isvalu(c) and p.sdata & c.w: n = max(n, 2)
        elif p.sdata & c.w: n = max(n, 1)
    return n

def fix_hazards(lines):
    ins = [Ins(t) for t in lines]
    changed = True; total = 0
    while changed:
        changed = False
        labels = {i.label: k for k, i in enumerate(ins) if i.label}
        preds = {}
        for k, i in enumerate(ins):
            if i.kind == "branch": preds.setdefault(labels[i.target], []).append(k)
        for k, c in enumerate(ins):
            if c.kind in ("label", "dir", "nop", "branch", "end", "salu", "other"): continue
            worst = 0
            stack = [(k, 0)]; seen = set()
            while stack:
                pos, dist = stack.pop()
                ps = []
                if pos > 0:
                    q = ins[pos - 1]
                    if not (q.kind == "end" or q.op == "s_branch"): ps.append(pos - 1)
                if ins[pos].kind == "label": ps += preds.get(pos, [])
                for q in ps:
                    if (q, dist) in seen: continue
                    seen.add((q, dist))
                    p = ins[q]
                    if p.op:
                        nd = need(p, c)
                        if nd > dist: worst = max(worst, nd - dist)
                    d2 = dist + p.states()
                    if d2 < 12: stack.append((q, d2))
            if worst:
                ins.insert(k, Ins(f"s_nop {worst-1}"))
                total += worst
                changed = True
                break
    return [i.text for i in ins], total
```

```python
import struct, sys
from asmlib import fix_hazards

NAME = "sequential_preLN__sliding_block_cached__dense_activation_silu__decode"
f2u = lambda x: struct.unpack("<I", struct.pack("<f", x))[0]
hx = lambda x: "0x%08x" % (x & 0xffffffff)

OBUF = 0
YBUF = OBUF + 96 * 1024
HBUF = YBUF + 24 * 20480
FBUF = HBUF + 8 * 2560
CLR_END = FBUF + 24 * 20480
CLR_PER_WG = 4352
QBUF = 256 * CLR_PER_WG
WS_USED = QBUF + 8 * 24 * 2048
STAMP = 2 << 20
XRS = 1296
L_XN = 0
L_Q = L_XN + 8 * XRS
L_SM = L_Q + 384
L_OP = L_SM + 64
SRS = 144
L_SA = L_OP + 4 * 3072
L_W = L_SA + 8 * SRS
LDS_BYTES = L_W + 81920

sX, sR, sH, sB, sW = 26, 27, 28, 29, 30
srdK, srdV, srdX, srdWt, srdWS, srdDBG, srdOUT = 32, 36, 40, 44, 48, 52, 56
sPlo, sPhi, sLOC, sRot, sOff, sCnt = 80, 81, 82, 83, 84, 85
sT = 60
sST = 86
SPIN = 100000

def srd(n): return f"s[{n}:{n+3}]"
def vr(a, n=4): return f"v[{a}:{a+n-1}]" if n > 1 else f"v{a}"

class G:
    def __init__(self, **o):
        self.o = dict(W=5, rot=11, burst3=6, burst4=3, ring=48, stamps=False, local=True, pollld="sc1",
                      hw=4, ow=4, wk0=8, W2=None, w2from=168)
        self.o.update(o)
        self.L = []
        self.nst = 0

    def a(self, s): self.L.append(s)

    def stamp(self, k):
        if self.o["stamps"]:
            self.a(f"s_memrealtime s[{sT+18}:{sT+19}]")
            self.a("s_waitcnt lgkmcnt(0)")
            self.a(f"s_mov_b32 s{sST+k}, s{sT+18}")

    def mksrd(self, d, base, nbytes, off=None):
        a = self.a
        if off is None:
            a(f"s_mov_b32 s{d}, s{base}"); a(f"s_mov_b32 s{d+1}, s{base+1}")
        else:
            a(f"s_add_u32 s{d}, s{base}, {off}"); a(f"s_addc_u32 s{d+1}, s{base+1}, 0")
        a(f"s_mov_b32 s{d+2}, {nbytes}"); a(f"s_mov_b32 s{d+3}, 0x20000")

    def red_low3(self, op, v):
        a = self.a
        a(f"{op}_dpp v{v}, v{v}, v{v} quad_perm:[1,0,3,2] row_mask:0xf bank_mask:0xf")
        a(f"{op}_dpp v{v}, v{v}, v{v} quad_perm:[2,3,0,1] row_mask:0xf bank_mask:0xf")
        a(f"{op}_dpp v{v}, v{v}, v{v} row_half_mirror row_mask:0xf bank_mask:0xf")

    def red_high3(self, op, v, t):
        a = self.a
        a(f"{op}_dpp v{v}, v{v}, v{v} row_ror:8 row_mask:0xf bank_mask:0xf")
        a(f"v_mov_b32 v{t}, v{v}")
        a(f"v_permlane16_swap_b32 v{v}, v{t}")
        a(f"{op} v{v}, v{v}, v{t}")
        a(f"v_mov_b32 v{t}, v{v}")
        a(f"v_permlane32_swap_b32 v{v}, v{t}")
        a(f"{op} v{v}, v{v}, v{t}")

    def layernorm(self):
        a = self.a
        z = list(range(40, 50)); d = list(range(50, 60))
        a("v_add_f32 v60, v40, v41"); a("v_add_f32 v61, v42, v43"); a("v_add_f32 v62, v44, v45"); a("v_add_f32 v63, v46, v47")
        a("v_add_f32 v60, v60, v61"); a("v_add_f32 v62, v62, v63"); a("v_add_f32 v61, v48, v49")
        a("v_add_f32 v60, v60, v62"); a("v_add_f32 v60, v60, v61")
        self.red_low3("v_add_f32", 60); self.red_high3("v_add_f32", 60, 61)
        a(f"v_mul_f32 v60, {hx(f2u(1.0/640))}, v60")
        for i in range(10): a(f"v_sub_f32 v{d[i]}, v{z[i]}, v60")
        a("v_mul_f32 v61, v50, v50"); a("v_mul_f32 v62, v51, v51")
        for i in range(2, 10, 2):
            a(f"v_fmac_f32 v61, v{d[i]}, v{d[i]}"); a(f"v_fmac_f32 v62, v{d[i+1]}, v{d[i+1]}")
        a("v_cvt_pk_bf16_f32 v60, v60, v60")
        a("v_add_f32 v61, v61, v62")
        a("v_and_b32 v60, 0xffff0000, v60")
        fill = []
        for i in range(10): fill.append(f"v_sub_f32 v{d[i]}, v{z[i]}, v60")
        for i in range(5): fill.append(f"v_cvt_pk_bf16_f32 v{32+i}, v{d[2*i]}, v{d[2*i+1]}")
        for i in range(5):
            fill.append(f"v_lshlrev_b32 v{d[2*i]}, 16, v{32+i}"); fill.append(f"v_and_b32 v{d[2*i+1]}, 0xffff0000, v{32+i}")
        chain = ["v_add_f32_dpp v61, v61, v61 quad_perm:[1,0,3,2] row_mask:0xf bank_mask:0xf",
                 "v_add_f32_dpp v61, v61, v61 quad_perm:[2,3,0,1] row_mask:0xf bank_mask:0xf",
                 "v_add_f32_dpp v61, v61, v61 row_half_mirror row_mask:0xf bank_mask:0xf",
                 "v_add_f32_dpp v61, v61, v61 row_ror:8 row_mask:0xf bank_mask:0xf\nv_mov_b32 v62, v61",
                 "v_permlane16_swap_b32 v61, v62\nv_add_f32 v61, v61, v62\nv_mov_b32 v62, v61",
                 "v_permlane32_swap_b32 v61, v62\nv_add_f32 v61, v61, v62\n" + f"v_mul_f32 v61, {hx(f2u(1.0/640))}, v61\n"
                 "v_cvt_pk_bf16_f32 v61, v61, v61\nv_and_b32 v61, 0xffff0000, v61\n"
                 f"v_add_f32 v61, {hx(f2u(1e-5))}, v61\nv_cvt_pk_bf16_f32 v61, v61, v61\nv_and_b32 v61, 0xffff0000, v61\nv_sqrt_f32 v61, v61",
                 "v_cvt_pk_bf16_f32 v61, v61, v61\nv_and_b32 v61, 0xffff0000, v61\nv_rcp_f32 v61, v61"]
        for c in chain:
            for _ in range(2):
                if fill: a(fill.pop(0))
            for s in c.split("\n"): a(s)
        for s in fill: a(s)
        for i in range(10): a(f"v_mul_f32 v{d[i]}, v{d[i]}, v61")
        for i in range(5): a(f"v_cvt_pk_bf16_f32 v{32+i}, v{d[2*i]}, v{d[2*i+1]}")

    def transpose(self, raw, dst):
        for m in range(8):
            for d in range(4):
                self.a(f"v_perm_b32 v{dst+4*m+d}, v{raw+4*(2*d+1)+(m>>1)}, v{raw+4*(2*d)+(m>>1)}, s{sPhi if m & 1 else sPlo}")

    def combine4(self, accs, dst):
        a = self.a
        for rr in range(4):
            a(f"v_permlane32_swap_b32 v{accs[0]+rr}, v{accs[2]+rr}")
            a(f"v_permlane32_swap_b32 v{accs[1]+rr}, v{accs[3]+rr}")
        for rr in range(4):
            a(f"v_add_f32_dpp v{dst+rr}, v{accs[2]+rr}, v{accs[0]+rr} row_ror:8 row_mask:0xf bank_mask:0x3")
        for rr in range(4):
            a(f"v_add_f32_dpp v{dst+rr}, v{accs[1]+rr}, v{accs[3]+rr} row_ror:8 row_mask:0xf bank_mask:0xc")

    def poll(self, name, loads, regs, tmp):
        a = self.a
        a(f"s_mov_b32 s{sCnt}, {SPIN}")
        a(f"{name}:")
        for s in loads: a(s)
        a(f"s_sub_u32 s{sCnt}, s{sCnt}, 1")
        a(f"s_cbranch_scc1 {name}_x")
        a("s_waitcnt vmcnt(0)")
        regs = list(regs)
        a(f"v_max3_u32 v{tmp}, v{regs[0]}, v{regs[1]}, v{regs[2]}")
        regs = regs[3:]
        while len(regs) >= 2:
            a(f"v_max3_u32 v{tmp}, v{tmp}, v{regs[0]}, v{regs[1]}"); regs = regs[2:]
        if regs: a(f"v_max_u32 v{tmp}, v{tmp}, v{regs[0]}")
        a(f"v_cmp_eq_u32 vcc, -1, v{tmp}")
        a(f"s_cbranch_vccnz {name}")
        a(f"{name}_x:")
        a("s_waitcnt vmcnt(0)")

    def pub(self, name, stores):
        a = self.a
        if not self.o["local"]:
            for s in stores: a(s + " sc1")
            return
        a(f"s_cmp_eq_u32 s{sLOC}, 1")
        a(f"s_cbranch_scc1 {name}_l")
        for s in stores: a(s + " sc1")
        a(f"s_branch {name}_e")
        a(f"{name}_l:")
        for s in stores: a(s)
        a(f"{name}_e:")

    def reduce24(self, z):
        a = self.a
        for rr in range(4): a(f"v_add_f32 v{z+rr}, v{z+rr}, v{z+4+rr}")
        for rr in range(4): a(f"v_add_f32 v{z+rr}, v{z+rr}, v{z+8+rr}")
        a(f"v_permlane32_swap_b32 v{z}, v{z+2}")
        a(f"v_permlane32_swap_b32 v{z+1}, v{z+3}")
        a(f"v_add_f32 v{z}, v{z}, v{z+2}")
        a(f"v_add_f32 v{z+1}, v{z+1}, v{z+3}")
        a(f"v_permlane16_swap_b32 v{z}, v{z+1}")
        a(f"v_add_f32 v{z}, v{z}, v{z+1}")
        a(f"v_add_f32_dpp v{z}, v{z}, v{z} row_ror:8 row_mask:0xf bank_mask:0xf")

    def read_frags(self, dst):
        a = self.a
        a(f"s_lshl_b32 s{sT}, s{sW}, 10")
        a(f"s_add_u32 s{sT}, s{sT}, {L_W}")
        a(f"v_add_u32 v4, s{sT}, v3")
        a("v_add_u32 v5, 0x10000, v4")
        for k in range(10):
            if k < 8: a(f"ds_read_b128 {vr(dst+4*k)}, v4 offset:{8192*k}")
            else: a(f"ds_read_b128 {vr(dst+4*k)}, v5 offset:{8192*(k-8)}")

    def stream_setup(self):
        self.issued = 0; self.done = 0
        self.free = list(range(self.o["ring"])); self.slot = {}
        self.maxslot = self.o["ring"]

    def wait_out(self, n):
        if self.issued - self.done > n:
            self.a(f"s_waitcnt vmcnt({n})"); self.done = self.issued - n

    def issue(self, throttle=True):
        i = self.issued
        if i >= 192: return
        W = self.o["W"]
        if self.o["W2"] and i >= self.o["w2from"]: W = self.o["W2"]
        if throttle: self.wait_out(W - 1)
        self.free.sort()
        s = self.free.pop(0); assert s < self.maxslot, (i, s)
        self.slot[i] = s
        t = i % 3
        if t == 0 and i > 0:
            self.a(f"s_add_u32 s{sOff}, s{sOff}, 3072")
            self.a(f"s_cmp_eq_u32 s{sOff}, 98304")
            self.a(f"s_cselect_b32 s{sOff}, 0, s{sOff}")
        r = 64 + 4 * s
        self.a(f"buffer_load_dwordx4 {vr(r)}, v12, {srd(srdK if i < 96 else srdV)}, s{sOff} offen offset:{128*t} nt")
        self.issued += 1

    def consumeK(self, g):
        a = self.a
        self.wait_out(self.issued - 3 * (g + 1))
        base = [64 + 4 * self.slot[3 * g + t] for t in range(3)]
        acc = [32 + g, 13, 14]
        for d in range(4):
            for t in range(3):
                c = "0" if d == 0 else f"v{acc[t]}"
                a(f"v_dot2_f32_bf16 v{acc[t]}, v{base[t]+d}, v{16+4*t+d}, {c}")
        for t in range(3): self.free.append(self.slot.pop(3 * g + t))
        a("v_add_f32 v13, v13, v14")
        a(f"v_add_f32 v{32+g}, v{32+g}, v13")
        self.red_low3("v_add_f32", 32 + g)
        if g & 1:
            p, q = 32 + g - 1, 32 + g
            a(f"v_cvt_pk_bf16_f32 v13, v{p}, v{q}")
            a(f"v_lshlrev_b32 v{p}, 16, v13"); a(f"v_and_b32 v{q}, 0xffff0000, v13")
            sc = hx(f2u(192 ** -0.5))
            a(f"v_mul_f32 v{p}, {sc}, v{p}"); a(f"v_mul_f32 v{q}, {sc}, v{q}")
            a(f"v_cvt_pk_bf16_f32 v13, v{p}, v{q}")
            a(f"v_lshlrev_b32 v{p}, 16, v13"); a(f"v_and_b32 v{q}, 0xffff0000, v13")
            if g == 1: a(f"v_max_f32 v15, v{p}, v{q}")
            else: a(f"v_max3_f32 v15, v15, v{p}, v{q}")

    def consumeV(self, g, fine=False):
        a = self.a
        A = 4 if g & 1 else 8
        for d in range(4): a(f"v_and_b32 v{A+d}, v{32+g}, v{28+d}")
        i0 = 96 + 3 * g
        if not fine: self.wait_out(self.issued - (i0 + 3))
        for t in range(3):
            if fine: self.wait_out(self.issued - (i0 + t + 1))
            s = self.slot.pop(i0 + t); self.free.append(s)
            c = "0" if g == 0 else vr(16 + 4 * t)
            a(f"v_mfma_f32_16x16x32_bf16 {vr(16+4*t)}, {vr(A)}, {vr(64+4*s)}, {c}")

    def gen(self):
        a = self.a; o = self.o
        W = o["W"]
        a(f"{NAME}_kernel:")
        a("s_cmp_ge_u32 s2, 256")
        a("s_cbranch_scc1 L_end")
        a("s_load_dwordx16 s[4:19], s[0:1], 0")
        a("s_load_dwordx4 s[20:23], s[0:1], 64")
        a("s_load_dwordx2 s[24:25], s[0:1], 80")
        if o["stamps"]:
            a(f"s_memrealtime s[{sST}:{sST+1}]")
        a("v_lshrrev_b32 v4, 6, v0")
        a("v_and_b32 v0, 63, v0")
        a(f"s_and_b32 s{sX}, s2, 7")
        a(f"v_readfirstlane_b32 s{sW}, v4")
        a(f"s_lshr_b32 s{sR}, s2, 3")
        a(f"s_and_b32 s{sT}, s{sR}, 3")
        a(f"s_lshl2_add_u32 s{sH}, s{sX}, s{sT}")
        a(f"s_lshr_b32 s{sB}, s{sR}, 2")
        a("v_and_b32 v1, 7, v0")
        a("v_lshlrev_b32 v1, 4, v1")
        a("v_lshlrev_b32 v3, 4, v0")
        a("v_lshrrev_b32 v6, 3, v0")
        a(f"s_mul_i32 s{sT+1}, s{sW}, 1280")
        a("v_lshlrev_b32 v5, 2, v0")
        a(f"s_lshl_b32 s{sT}, s{sB}, 5")
        a(f"s_add_u32 s{sT}, s{sT}, s{sH}")
        a(f"s_mul_i32 s{sT}, s{sT}, 1572864")
        a(f"s_add_u32 s{sT}, s{sT}, {3072*384}")
        a(f"s_mul_i32 s{sOff}, s2, {o['rot']}")
        a(f"s_and_b32 s{sOff}, s{sOff}, 31")
        a(f"s_mul_i32 s{sOff}, s{sOff}, 3072")
        a(f"s_mul_i32 s{sT+2}, s{sW}, 98304")
        a("v_mul_u32_u24 v12, 384, v6")
        a(f"v_add3_u32 v12, v12, v1, s{sT+2}")
        a("s_waitcnt lgkmcnt(0)")
        if o["stamps"]:
            for k in range(1, 16): a(f"s_mov_b32 s{sST+k}, 0")
        self.mksrd(srdX, 4, 10240)
        self.mksrd(srdK, 6, 393216, f"s{sT}")
        a(f"buffer_load_dwordx4 v[32:35], v3, {srd(srdX)}, s{sT+1} offen")
        a(f"buffer_load_dword v36, v5, {srd(srdX)}, s{sT+1} offen offset:1024")
        a(f"s_cmp_ge_u32 s{sW}, 4")
        a("s_cbranch_scc1 L_hpro")
        self.stream_setup()
        for _ in range(W): self.issue(throttle=False)
        a("L_hpro:")
        self.mksrd(srdV, 8, 393216, f"s{sT}")
        self.mksrd(srdWS, 24, WS_USED if not o["stamps"] else 4 << 20)
        self.mksrd(srdWt, 10, 7864320)
        a("v_lshrrev_b32 v2, 4, v0")
        a("v_and_b32 v7, 1, v6")
        a("v_lshl_add_u32 v2, v7, 2, v2")
        a(f"s_mov_b32 s{sPlo}, 0x05040100")
        a(f"s_mov_b32 s{sPhi}, 0x07060302")
        a(f"s_cmp_ge_u32 s{sW}, 4")
        a("s_cbranch_scc1 L_hpro2")
        a(f"s_waitcnt vmcnt({W})")
        a("s_branch L_ln1")
        a("L_hpro2:")
        a(f"s_cmp_eq_u32 s{sW}, 5")
        a("s_cbranch_scc1 L_clear")
        a(f"s_cmp_lg_u32 s{sW}, 4")
        a("s_cbranch_scc1 L_w0")
        a(f"s_cmp_ge_u32 s{sR}, 24")
        a("s_cbranch_scc1 L_w0")
        a(f"s_cmp_ge_u32 s{sR}, 12")
        a(f"s_cselect_b32 s{sT+3}, 1, 0")
        a(f"s_mul_i32 s{sT+4}, s{sT+3}, 12")
        a(f"s_sub_u32 s{sT+4}, s{sR}, s{sT+4}")
        a(f"s_mul_i32 s{sT+5}, s{sT+3}, {320*12288}")
        a(f"s_mul_i32 s{sT+6}, s{sX}, 1536")
        a(f"s_add_u32 s{sT+5}, s{sT+5}, s{sT+6}")
        a(f"s_lshl_b32 s{sT+6}, s{sT+4}, 7")
        a(f"s_add_u32 s{sT+5}, s{sT+5}, s{sT+6}")
        a(f"v_mul_u32_u24 v7, {8*12288}, v2")
        a("v_add_u32 v7, v7, v1")
        a(f"s_movk_i32 s{sT+6}, 12288")
        a(f"s_mov_b32 s{sT+7}, {57*12288}")
        for kb in range(5):
            for e in range(8):
                a(f"buffer_load_dwordx4 {vr(64+32*kb+4*e)}, v7, {srd(srdWt)}, s{sT+5} offen nt")
                if kb * 8 + e < 39: a(f"s_add_u32 s{sT+5}, s{sT+5}, s{sT+6 if e < 7 else sT+7}")
        a("s_waitcnt vmcnt(40)")
        a("s_branch L_ln1")
        a("L_clear:")
        for k in range(4): a(f"v_mov_b32 v{8+k}, -1")
        a(f"s_mul_i32 s{sT+3}, s2, {CLR_PER_WG}")
        for k in range(4): a(f"buffer_store_dwordx4 v[8:11], v3, {srd(srdWS)}, s{sT+3} offen offset:{1024*k} sc1")
        a(f"s_add_u32 s{sT+3}, s{sT+3}, 4096")
        a("s_mov_b64 exec, 0xffff")
        a(f"buffer_store_dwordx4 v[8:11], v3, {srd(srdWS)}, s{sT+3} offen sc1")
        a("s_mov_b64 exec, -1")
        a("L_w0:")
        a("s_waitcnt vmcnt(0)")
        a("L_ln1:")
        for i in range(5):
            a(f"v_lshlrev_b32 v{40+2*i}, 16, v{32+i}"); a(f"v_and_b32 v{41+2*i}, 0xffff0000, v{32+i}")
        self.layernorm()
        a(f"s_mul_i32 s{sT+8}, s{sW}, {XRS}")
        a(f"v_add_u32 v8, s{sT+8}, v3")
        a(f"v_add_u32 v9, s{sT+8}, v5")
        a(f"ds_write_b128 v8, v[32:35] offset:{L_XN}")
        a(f"ds_write_b32 v9, v36 offset:{L_XN+1024}")
        a("s_waitcnt lgkmcnt(0)")
        a("s_barrier")
        self.stamp(1)
        a(f"s_cmp_ge_u32 s{sW}, 4")
        a("s_cbranch_scc1 L_helper")

        a("v_and_b32 v4, 1, v0")
        a("v_lshlrev_b32 v4, 4, v4")
        a("v_mov_b32 v7, 0xffff")
        a("v_lshlrev_b32 v4, v4, v7")
        a("v_bfe_u32 v7, v0, 1, 2")
        for d in range(4):
            a(f"v_cmp_eq_u32 vcc, {d}, v7")
            a(f"v_cndmask_b32 v{28+d}, 0, v4, vcc")
        while self.issued < o["ring"]: self.issue()
        self.stamp(2)
        a("s_barrier")
        self.stamp(3)
        for t in range(3): a(f"ds_read_b128 {vr(16+4*t)}, v1 offset:{L_Q+128*t}")
        a("s_waitcnt lgkmcnt(0)")
        g = 0
        while g < 32:
            lag = self.issued // 3 - g
            n = 2 if lag > 3 else 1
            for _ in range(n):
                if g < 32: self.consumeK(g); g += 1
            if g < 32:
                for _ in range(3): self.issue()
        self.maxslot = 28
        assert all(s < 28 for s in self.slot.values())
        self.red_high3("v_max_f32", 15, 13)
        a(f"s_lshl_b32 s{sT}, s{sW}, 2")
        a(f"v_mov_b32 v14, s{sT}")
        a("s_mov_b64 exec, 1")
        a(f"ds_write_b32 v14, v15 offset:{L_SM}")
        a("s_mov_b64 exec, -1")
        for _ in range(o["burst3"]): self.issue(throttle=False)
        a("s_waitcnt lgkmcnt(0)")
        self.stamp(4)
        a("s_barrier")
        self.stamp(5)
        a("v_mov_b32 v13, 0")
        a(f"ds_read_b128 v[8:11], v13 offset:{L_SM}")
        a(f"ds_read_b32 v16, v13 offset:{L_SM+32}")
        self.read_frags(176)
        a("s_waitcnt lgkmcnt(10)")
        a(f"v_readfirstlane_b32 s{sLOC}, v16")
        a("v_max3_f32 v15, v8, v9, v10")
        a("v_max_f32 v15, v15, v11")
        l2e = hx(f2u(1.4426950408889634))
        for g in range(32):
            a(f"v_sub_f32 v{32+g}, v{32+g}, v15")
            a(f"v_mul_f32 v{32+g}, {l2e}, v{32+g}")
            a(f"v_exp_f32 v{32+g}, v{32+g}")
            if g == 2: a("v_add_f32 v13, v32, v33")
            elif g > 2: a(f"v_add_f32 v13, v13, v{32+g-1}")
            if g % 11 == 10: self.issue()
        a("v_add_f32 v13, v13, v63")
        self.red_high3("v_add_f32", 13, 15)
        a("s_mov_b64 exec, 1")
        a(f"ds_write_b32 v14, v13 offset:{L_SM+16}")
        a("s_mov_b64 exec, -1")
        for _ in range(o["burst4"]): self.issue(throttle=False)
        a("s_waitcnt lgkmcnt(0)")
        a("s_barrier")
        self.stamp(6)
        a("v_mov_b32 v13, 0")
        a(f"ds_read_b128 v[8:11], v13 offset:{L_SM+16}")
        a("s_waitcnt lgkmcnt(0)")
        a("v_add_f32 v8, v8, v9"); a("v_add_f32 v10, v10, v11"); a("v_add_f32 v13, v8, v10")
        a("v_rcp_f32 v13, v13")
        for g in range(32):
            a(f"v_mul_f32 v{32+g}, v{32+g}, v13")
            a(f"v_cvt_pk_bf16_f32 v{32+g}, v{32+g}, v{32+g}")
            if g % 16 == 15: self.issue()
        while self.issued % 3: self.issue()
        g = 0
        while g < 32:
            lag = (self.issued - 96) // 3 - g
            if self.issued >= 192:
                self.consumeV(g, fine=True); g += 1
                continue
            Wc = o["W2"] if (o["W2"] and self.issued >= o["w2from"]) else W
            keep = (Wc + 2) // 3 + 1
            n = 2 if lag > keep else (1 if lag == keep else 0)
            for _ in range(n): self.consumeV(g); g += 1
            for _ in range(3): self.issue()
        a(f"s_mul_i32 s{sT}, s{sW}, 3072")
        a(f"v_add_u32 v4, s{sT}, v3")
        for t in range(3): a(f"ds_write_b128 v4, {vr(16+4*t)} offset:{L_OP+1024*t}")
        a("s_waitcnt lgkmcnt(0)")
        self.stamp(7)
        a("s_barrier")
        a(f"s_cmp_lg_u32 s{sX}, 0")
        a("s_cbranch_scc1 L_done")
        a(f"s_mov_b32 s{sT+10}, s{sW}")
        a("s_branch L_grp0")

        a("L_helper:")
        self.mksrd(srdDBG, 22, 256)
        a(f"s_cmp_lg_u32 s{sW}, 4")
        a("s_cbranch_scc1 L_h123")
        a(f"s_cmp_ge_u32 s{sR}, 24")
        a("s_cbranch_scc1 L_qsig")
        a("v_and_b32 v4, 7, v0")
        a(f"v_mul_u32_u24 v4, {XRS}, v4")
        a("v_lshl_add_u32 v4, v2, 4, v4")
        a(f"s_mul_i32 s{sT+5}, s{sT+3}, 640")
        a(f"v_add_u32 v4, s{sT+5}, v4")
        for kb in range(5): a(f"ds_read_b128 {vr(12+4*kb)}, v4 offset:{L_XN+128*kb}")
        for kb in range(5):
            a(f"s_waitcnt vmcnt({8*(4-kb)})")
            self.transpose(64 + 32 * kb, 224)
            if kb == 0: a("s_waitcnt lgkmcnt(0)")
            for m in range(8):
                c = "0" if kb == 0 else vr(32 + 4 * m)
                a(f"v_mfma_f32_16x16x32_bf16 {vr(32+4*m)}, {vr(12+4*kb)}, {vr(224+4*m)}, {c}")
        for q in range(2):
            self.combine4([32 + 4 * (4 * q + k) for k in range(4)], 4 + 4 * q)
        a(f"s_mul_i32 s{sT+5}, s{sX}, 24")
        a(f"s_add_u32 s{sT+5}, s{sT+5}, s{sR}")
        a(f"s_lshl_b32 s{sT+5}, s{sT+5}, 11")
        a(f"s_add_u32 s{sT+5}, s{sT+5}, {QBUF}")
        for q in range(2): a(f"buffer_store_dwordx4 {vr(4+4*q)}, v3, {srd(srdWS)}, s{sT+5} offen offset:{1024*q} sc1")
        a("s_waitcnt vmcnt(0)")
        a("L_qsig:")
        self.stamp(2)
        a(f"s_getreg_b32 s{sT+5}, hwreg(HW_REG_XCC_ID, 0, 4)")
        a(f"s_mul_i32 s{sT+6}, s{sT+5}, s{sT+5}")
        a(f"s_lshl_b32 s{sT+6}, s{sT+6}, 18")
        a(f"s_lshl_b32 s{sT+5}, s{sT+5}, 8")
        a(f"s_add_u32 s{sT+5}, s{sT+5}, s{sT+6}")
        a(f"s_add_u32 s{sT+5}, s{sT+5}, 1")
        a(f"v_mov_b32 v12, s{sT+5}")
        a(f"s_lshl_b32 s{sT+6}, s{sX}, 5")
        a(f"v_mov_b32 v13, s{sT+6}")
        a("s_mov_b64 exec, 1")
        a(f"buffer_atomic_add v12, v13, {srd(srdDBG)}, 0 offen sc1")
        a(f"s_mov_b32 s{sCnt}, {SPIN}")
        a("L_qwait:")
        a(f"buffer_load_dword v14, v13, {srd(srdDBG)}, 0 offen sc1")
        a(f"s_sub_u32 s{sCnt}, s{sCnt}, 1")
        a("s_cbranch_scc1 L_qwait_x")
        a("s_waitcnt vmcnt(0)")
        a("v_and_b32 v15, 0xff, v14")
        a("v_cmp_ne_u32 vcc, 32, v15")
        a("s_cbranch_vccnz L_qwait")
        a("L_qwait_x:")
        a("s_waitcnt vmcnt(0)")
        a("s_mov_b64 exec, -1")
        a("v_lshrrev_b32 v8, 4, v0")
        a("v_lshlrev_b32 v8, 9, v8")
        a("v_and_b32 v9, 8, v0")
        a("v_lshl_add_u32 v8, v9, 4, v8")
        a("v_add_u32 v8, v8, v1")
        a(f"s_and_b32 s{sT+6}, s{sR}, 3")
        a(f"s_mul_i32 s{sT+6}, s{sT+6}, 3")
        a(f"s_mul_i32 s{sT+7}, s{sX}, 24")
        a(f"s_add_u32 s{sT+6}, s{sT+6}, s{sT+7}")
        a(f"s_lshl_b32 s{sT+6}, s{sT+6}, 11")
        a(f"s_lshr_b32 s{sT+7}, s{sB}, 2")
        a(f"s_lshl_b32 s{sT+7}, s{sT+7}, 8")
        a(f"s_add_u32 s{sT+6}, s{sT+6}, s{sT+7}")
        a(f"s_and_b32 s{sT+7}, s{sB}, 3")
        a(f"s_lshl2_add_u32 s{sT+6}, s{sT+7}, s{sT+6}")
        a(f"s_add_u32 s{sT+6}, s{sT+6}, {QBUF}")
        for k in range(6):
            rb, t = divmod(k, 3)
            a(f"s_add_u32 s{sT+7}, s{sT+6}, {rb*12*2048 + t*2048}")
            a(f"buffer_load_dword v{16+k}, v8, {srd(srdWS)}, s{sT+7} offen sc1")
        a(f"v_readfirstlane_b32 s{sT+7}, v14")
        a(f"s_lshl_b32 s{sT+5}, s{sT+5}, 5")
        a(f"s_cmp_eq_u32 s{sT+5}, s{sT+7}")
        a(f"s_cselect_b32 s{sLOC}, 1, 0")
        a(f"v_mov_b32 v10, s{sLOC}")
        a("v_mov_b32 v11, 0")
        a("v_lshrrev_b32 v9, 3, v0")
        a("v_lshl_add_u32 v9, v9, 1, v1")
        a(f"ds_write_b32 v11, v10 offset:{L_SM+32}")
        a("s_waitcnt vmcnt(0)")
        for t in range(3):
            a(f"v_add_f32 v{16+t}, v{16+t}, v{19+t}")
            a(f"v_cvt_pk_bf16_f32 v{16+t}, v{16+t}, v{16+t}")
            a(f"ds_write_b16 v9, v{16+t} offset:{L_Q+128*t}")
        a("s_waitcnt lgkmcnt(0)")
        self.stamp(3)
        a("s_barrier")
        a("s_barrier")
        self.read_frags(176)
        a("s_waitcnt lgkmcnt(0)")
        a("s_barrier")
        a(f"s_cmp_ge_u32 s{sR}, 30")
        a("s_cbranch_scc1 L_allwait0")
        self.mksrd(srdWt, 12, 7864320)
        a(f"s_mul_i32 s{sT+3}, s{sR}, 26")
        a(f"s_lshr_b32 s{sT+3}, s{sT+3}, 8")
        a(f"s_mul_i32 s{sT+4}, s{sT+3}, 10")
        a(f"s_sub_u32 s{sT+4}, s{sR}, s{sT+4}")
        a(f"s_mul_i32 s{sT+5}, s{sX}, 3")
        a(f"s_add_u32 s{sT+3}, s{sT+3}, s{sT+5}")
        a(f"s_mul_i32 s{sT+5}, s{sT+3}, {256*1280}")
        a(f"s_lshl_b32 s{sT+6}, s{sT+4}, 7")
        a(f"s_add_u32 s{sT+5}, s{sT+5}, s{sT+6}")
        a(f"v_mul_u32_u24 v7, {8*1280}, v2")
        a("v_add_u32 v7, v7, v1")
        ow = o["ow"]
        for kb in range(4):
            for e in range(8):
                if e % 4 == 0: a(f"s_add_u32 s{sT+6}, s{sT+5}, {(64*kb + e) * 1280}")
                if e >= ow: a(f"s_waitcnt vmcnt({ow-1})")
                a(f"buffer_load_dwordx4 {vr(216+4*e)}, v7, {srd(srdWt)}, s{sT+6} offen offset:{(e%4)*1280} nt")
            a("s_waitcnt vmcnt(0)")
            self.transpose(216, 48 + 32 * kb)
        a("L_allwait0:")
        a("v_lshlrev_b32 v13, 5, v0")
        a("s_mov_b64 exec, 0xff")
        a(f"s_mov_b32 s{sCnt}, {SPIN}")
        a("L_allwait:")
        a(f"buffer_load_dword v14, v13, {srd(srdDBG)}, 0 offen sc1")
        a(f"s_sub_u32 s{sCnt}, s{sCnt}, 1")
        a("s_cbranch_scc1 L_allwait_x")
        a("s_waitcnt vmcnt(0)")
        a("v_and_b32 v15, 0xff, v14")
        a("v_cmp_ne_u32 vcc, 32, v15")
        a("s_cbranch_vccnz L_allwait")
        a("L_allwait_x:")
        a("s_waitcnt vmcnt(0)")
        a("s_mov_b64 exec, -1")
        a(f"s_lshl_b32 s{sT+6}, s{sT+3}, 12")
        a(f"s_mul_i32 s{sT+7}, s{sT+3}, 20480")
        a(f"s_lshl_b32 s{sT+8}, s{sT+4}, 11")
        a(f"s_add_u32 s{sT+7}, s{sT+7}, s{sT+8}")
        a(f"s_add_u32 s{sT+7}, s{sT+7}, {YBUF}")
        self.stamp(6)
        a("s_barrier")
        a(f"s_cmp_ge_u32 s{sR}, 30")
        a("s_cbranch_scc1 L_h0done")
        self.poll("L_po", [f"buffer_load_dwordx4 {vr(16+4*kb)}, v3, {srd(srdWS)}, s{sT+6} offen offset:{OBUF+1024*kb} {o['pollld']}" for kb in range(4)],
                  range(16, 32), 4)
        self.stamp(8)
        for m in range(8):
            for kb in range(4):
                c = "0" if kb == 0 else vr(216 + 4 * m)
                a(f"v_mfma_f32_16x16x32_bf16 {vr(216+4*m)}, {vr(16+4*kb)}, {vr(48+32*kb+4*m)}, {c}")
            if m == 5:
                self.combine4([216 + 4 * k for k in range(4)], 32)
                a(f"buffer_store_dwordx4 v[32:35], v3, {srd(srdWS)}, s{sT+7} offen sc1")
        self.combine4([216 + 4 * (4 + k) for k in range(4)], 36)
        a(f"buffer_store_dwordx4 v[36:39], v3, {srd(srdWS)}, s{sT+7} offen offset:1024 sc1")
        self.stamp(9)
        a("L_h0done:")
        a(f"s_cmp_lg_u32 s{sX}, 0")
        a("s_cbranch_scc1 L_done")
        a(f"s_mov_b32 s{sT+10}, 7")
        a("s_branch L_grp0")

        a("L_h123:")
        wk0 = o["wk0"]
        a(f"s_sub_u32 s{sT+3}, s{sR}, {wk0}")
        a(f"s_cmp_lt_u32 s{sT+3}, 24")
        a(f"s_cselect_b32 s{sT+4}, 1, 0")
        a(f"s_cmp_eq_u32 s{sX}, 0")
        a(f"s_cselect_b32 s{sT+4}, s{sT+4}, 0")
        a(f"s_sub_u32 s{sT+5}, s{sW}, 5")
        a("s_barrier")
        hw = o["hw"]
        def stage(tag, ptr, nbytes, rstride, base_expr, blkstep):
            a(f"s_cmp_eq_u32 s{sT+4}, 0")
            a(f"s_cbranch_scc1 {tag}_e")
            self.mksrd(srdWt, ptr, nbytes)
            a(f"v_mul_u32_u24 v7, {rstride}, v2")
            a("v_add_u32 v7, v7, v1")
            a(f"s_mul_i32 s{sT+6}, s{sT+3}, {base_expr}")
            a(f"s_mov_b32 s{sT+7}, s{sT+5}")
            a(f"{tag}:")
            a(f"s_mul_i32 s{sT+8}, s{sT+7}, {blkstep}")
            a(f"s_add_u32 s{sT+8}, s{sT+8}, s{sT+6}")
            for e in range(8):
                if e >= hw: a(f"s_waitcnt vmcnt({hw-1})")
                a(f"buffer_load_dwordx4 {vr(64+4*e)}, v7, {srd(srdWt)}, s{sT+8} offen nt")
                if e < 7: a(f"s_add_u32 s{sT+8}, s{sT+8}, {8*rstride}")
            a(f"s_lshl_b32 s{sT+8}, s{sT+7}, 13")
            a(f"s_add_u32 s{sT+8}, s{sT+8}, {L_W}")
            a(f"v_add_u32 v8, s{sT+8}, v3")
            a("s_waitcnt vmcnt(0) lgkmcnt(0)")
            self.transpose(64, 128)
            for m in range(8): a(f"ds_write_b128 v8, {vr(128+4*m)} offset:{1024*m}")
            a(f"s_add_u32 s{sT+7}, s{sT+7}, 3")
            a(f"s_cmp_lt_u32 s{sT+7}, 10")
            a(f"s_cbranch_scc1 {tag}")
            a("s_waitcnt lgkmcnt(0)")
            a(f"{tag}_e:")
        stage("L_st1", 16, 1966080, 3072, 128, 64 * 3072)
        self.stamp(4)
        a("s_barrier")
        a("v_mov_b32 v13, 0")
        a(f"ds_read_b32 v16, v13 offset:{L_SM+32}")
        self.read_frags(176)
        a("s_waitcnt lgkmcnt(0)")
        a(f"v_readfirstlane_b32 s{sLOC}, v16")
        a("s_barrier")
        stage("L_st2", 18, 1966080, 1280, 64 * 1280, 128)
        a("v_bfe_u32 v8, v0, 2, 1")
        a("v_lshl_add_u32 v8, v8, 4, v6")
        a("v_and_b32 v9, 3, v0")
        a("v_lshlrev_b32 v9, 2, v9")
        a("v_lshl_add_u32 v8, v8, 4, v9")
        a(f"s_lshl_b32 s{sT+6}, s{sT+5}, 10")
        a(f"s_add_u32 s{sT+6}, s{sT+6}, {L_OP}")
        a(f"v_add_u32 v8, s{sT+6}, v8")
        a("v_add_u32 v9, 640, v8")
        a("v_and_b32 v10, 3, v6")
        a("v_lshlrev_b32 v10, 8, v10")
        a("v_lshrrev_b32 v11, 5, v0")
        a("v_lshl_add_u32 v10, v11, 7, v10")
        a("v_and_b32 v11, 7, v0")
        a("v_lshl_add_u32 v10, v11, 1, v10")
        a(f"s_mul_i32 s{sT+6}, s{sH}, 3")
        a(f"s_add_u32 s{sT+6}, s{sT+6}, s{sT+5}")
        a(f"s_lshl_b32 s{sT+6}, s{sT+6}, 10")
        a(f"s_lshl4_add_u32 s{sT+6}, s{sB}, s{sT+6}")
        self.stamp(6)
        a("s_barrier")
        a("ds_read2st64_b32 v[16:17], v8 offset0:0 offset1:12")
        a("ds_read2st64_b32 v[18:19], v9 offset0:0 offset1:12")
        a("ds_read2st64_b32 v[20:21], v8 offset0:24 offset1:36")
        a("ds_read2st64_b32 v[22:23], v9 offset0:24 offset1:36")
        a("s_waitcnt lgkmcnt(2)")
        a("v_add_f32 v16, v16, v17"); a("v_add_f32 v18, v18, v19")
        a("s_waitcnt lgkmcnt(0)")
        a("v_add_f32 v20, v20, v21"); a("v_add_f32 v22, v22, v23")
        a("v_add_f32 v16, v16, v18"); a("v_add_f32 v20, v20, v22")
        a("v_add_f32 v16, v16, v20")
        a("v_mov_b32_dpp v17, v16 quad_perm:[1,0,3,2] row_mask:0xf bank_mask:0xf")
        a("v_cvt_pk_bf16_f32 v16, v16, v17")
        a("s_mov_b32 exec_lo, 0x55555555")
        a("s_mov_b32 exec_hi, 0x55555555")
        self.pub("L_pubo", [f"buffer_store_dword v16, v10, {srd(srdWS)}, s{sT+6} offen offset:{OBUF}"])
        a("s_mov_b64 exec, -1")
        self.stamp(8)
        a(f"s_cmp_lg_u32 s{sX}, 0")
        a("s_cbranch_scc1 L_done")
        a(f"s_cmp_eq_u32 s{sW}, 7")
        a(f"s_cselect_b32 s{sT+10}, 4, 7")

        a("L_grp0:")
        a(f"s_sub_u32 s{sT+11}, s{sR}, {wk0}")
        self.read_frags(216)
        self.mksrd(srdOUT, 20, 10240)
        a("v_lshrrev_b32 v6, 3, v0")
        a("v_mul_u32_u24 v15, 20480, v6")
        a("v_add_u32 v15, v15, v1")
        a(f"s_cmp_ge_u32 s{sT+10}, 5")
        a("s_cbranch_scc1 L_nored1")
        a(f"s_mul_i32 s{sT}, s{sR}, 5")
        a(f"s_add_u32 s{sT}, s{sT}, s{sT+10}")
        a(f"s_lshr_b32 s{sT+1}, s{sT}, 4")
        a(f"s_and_b32 s{sT+2}, s{sT}, 15")
        a(f"s_bfe_u32 s{sT+3}, s{sT+2}, 0x10001")
        a(f"s_lshr_b32 s{sT+4}, s{sT+2}, 2")
        a(f"s_and_b32 s{sT+5}, s{sT+2}, 1")
        a(f"s_lshl1_add_u32 s{sT+4}, s{sT+4}, s{sT+5}")
        a(f"s_lshl_b32 s{sT+12}, s{sT}, 7")
        a(f"s_add_u32 s{sT+12}, s{sT+12}, {YBUF}")
        a(f"s_add_u32 s{sT+13}, s{sT+12}, {8*20480}")
        a(f"s_add_u32 s{sT+14}, s{sT+12}, {16*20480}")
        a("v_lshrrev_b32 v8, 4, v0")
        a(f"s_lshl_b32 s{sT+5}, s{sT+3}, 2")
        a(f"v_add_u32 v8, s{sT+5}, v8")
        a("v_mul_u32_u24 v12, 1280, v8")
        a(f"s_lshl_b32 s{sT+5}, s{sT+1}, 7")
        a(f"s_lshl1_add_u32 s{sT+5}, s{sT+4}, s{sT+5}")
        a(f"v_add3_u32 v12, v12, v1, s{sT+5}")
        a(f"buffer_load_ushort v13, v12, {srd(srdX)}, 0 offen")
        a("v_mul_u32_u24 v9, 2560, v8")
        a("v_lshrrev_b32 v10, 2, v1")
        a(f"s_lshl_b32 s{sT+5}, s{sT+1}, 8")
        a(f"s_lshl_b32 s{sT+6}, s{sT+4}, 5")
        a(f"s_add_u32 s{sT+5}, s{sT+5}, s{sT+6}")
        a(f"v_add3_u32 v9, v9, v10, s{sT+5}")
        a(f"s_mov_b32 s{sT+15}, {HBUF}")
        self.poll("L_py", [f"buffer_load_dwordx4 {vr(64+4*i)}, v15, {srd(srdWS)}, s{sT+12+i} offen sc1" for i in range(3)],
                  range(64, 76), 4)
        self.stamp(10)
        self.reduce24(64)
        a("v_cvt_pk_bf16_f32 v64, v64, v64")
        a("v_lshlrev_b32 v13, 16, v13")
        a("v_and_b32 v64, 0xffff0000, v64")
        a("v_add_f32 v14, v13, v64")
        a("v_cvt_pk_bf16_f32 v14, v14, v14")
        a("v_and_b32 v14, 0xffff0000, v14")
        a("s_mov_b32 exec_lo, 0x00ff00ff")
        a("s_mov_b32 exec_hi, 0x00ff00ff")
        self.pub("L_pubh", [f"buffer_store_dword v14, v9, {srd(srdWS)}, s{sT+15} offen"])
        a("s_mov_b64 exec, -1")
        a(f"s_lshr_b32 s{sT+5}, s{sT+1}, 1")
        a(f"s_lshl_b32 s{sT+5}, s{sT+5}, 2")
        a(f"s_and_b32 s{sT+6}, s{sT+1}, 1")
        a(f"s_add_u32 s{sT+5}, s{sT+5}, s{sT+6}")
        a(f"s_lshl1_add_u32 s{sT+5}, s{sT+3}, s{sT+5}")
        a(f"s_lshl1_add_u32 s{sT+6}, s{sT+6}, s{sT+3}")
        a(f"s_add_u32 s{sT+6}, s{sT+6}, 16")
        a(f"s_cmp_lt_u32 s{sT+1}, 8")
        a(f"s_cselect_b32 s{sT+5}, s{sT+5}, s{sT+6}")
        a(f"s_lshl_b32 s{sT+5}, s{sT+5}, 7")
        a(f"s_mul_i32 s{sT+6}, s{sT+4}, 2560")
        a(f"s_add_u32 s{sT+12}, s{sT+5}, s{sT+6}")
        a(f"s_add_u32 s{sT+12}, s{sT+12}, {FBUF}")
        a(f"s_add_u32 s{sT+13}, s{sT+12}, {8*20480}")
        a(f"s_add_u32 s{sT+14}, s{sT+12}, {16*20480}")
        a("L_nored1:")
        a(f"s_cmp_ge_u32 s{sT+11}, 24")
        a("s_cbranch_scc1 L_noffn")
        a(f"s_mul_i32 s{sT}, s{sW}, 2560")
        a(f"s_add_u32 s{sT}, s{sT}, {HBUF}")
        a("v_lshlrev_b32 v8, 3, v0")
        a(f"s_mul_i32 s{sT+1}, s{sW}, {XRS}")
        a(f"v_add_u32 v10, s{sT+1}, v8")
        a("v_lshlrev_b32 v11, 2, v0")
        a(f"v_add_u32 v11, s{sT+1}, v11")
        a("v_and_b32 v5, 7, v0")
        a(f"v_mul_u32_u24 v7, {SRS}, v5")
        a("v_lshl_add_u32 v7, v2, 4, v7")
        a(f"v_mul_u32_u24 v5, {XRS}, v5")
        a("v_lshl_add_u32 v5, v2, 4, v5")
        a("v_bfe_u32 v16, v0, 4, 1")
        a("v_lshrrev_b32 v17, 5, v0")
        a("v_lshlrev_b32 v16, 2, v16")
        a("v_lshl_add_u32 v16, v17, 1, v16")
        a("v_bfe_u32 v17, v0, 3, 1")
        a("v_add_u32 v16, v16, v17")
        a(f"v_mul_u32_u24 v16, {SRS}, v16")
        a("v_lshrrev_b32 v17, 3, v1")
        a(f"s_lshl_b32 s{sT+1}, s{sW}, 4")
        a(f"v_add3_u32 v16, v16, v17, s{sT+1}")
        a(f"s_mul_i32 s{sT+2}, s{sT+11}, 20480")
        a(f"s_mul_i32 s{sT+3}, s{sW}, 2560")
        a(f"s_add_u32 s{sT+2}, s{sT+2}, s{sT+3}")
        a(f"s_add_u32 s{sT+2}, s{sT+2}, {FBUF}")
        a("v_lshrrev_b32 v17, 4, v0")
        a("v_lshl_add_u32 v17, v17, 7, v1")
        pl = o["pollld"]
        self.poll("L_ph", [f"buffer_load_dwordx4 v[40:43], v3, {srd(srdWS)}, s{sT} offen {pl}",
                           f"buffer_load_dwordx4 v[44:47], v3, {srd(srdWS)}, s{sT} offen offset:1024 {pl}",
                           f"buffer_load_dwordx2 v[48:49], v8, {srd(srdWS)}, s{sT} offen offset:2048 {pl}"],
                  range(40, 50), 4)
        self.stamp(11)
        self.layernorm()
        a(f"ds_write_b64 v10, v[32:33] offset:{L_XN}")
        a(f"ds_write_b64 v10, v[34:35] offset:{L_XN+512}")
        a(f"ds_write_b32 v11, v36 offset:{L_XN+1024}")
        a("s_waitcnt lgkmcnt(0)")
        a("s_barrier")
        for kb in range(10): a(f"ds_read_b128 {vr(76+4*kb)}, v5 offset:{L_XN+128*kb}")
        for kb in range(10):
            a(f"s_waitcnt lgkmcnt({9-kb})")
            c = "0" if kb == 0 else "v[116:119]"
            a(f"v_mfma_f32_16x16x32_bf16 v[116:119], {vr(76+4*kb)}, {vr(176+4*kb)}, {c}")
        a("v_permlane32_swap_b32 v116, v118")
        a("v_permlane32_swap_b32 v117, v119")
        a("v_add_f32_dpp v120, v118, v116 row_ror:8 row_mask:0xf bank_mask:0x3")
        a("v_add_f32_dpp v120, v117, v119 row_ror:8 row_mask:0xf bank_mask:0xc")
        a("v_cvt_pk_bf16_f32 v120, v120, v120")
        a("v_and_b32 v120, 0xffff0000, v120")
        a(f"v_mul_f32 v121, {hx(f2u(-1.4426950408889634))}, v120")
        a("v_exp_f32 v121, v121")
        a("v_add_f32 v121, 1.0, v121")
        a("v_rcp_f32 v121, v121")
        a("v_mul_f32 v120, v120, v121")
        a("v_cvt_pk_bf16_f32 v120, v120, v120")
        a(f"ds_write_b16 v16, v120 offset:{L_SA}")
        a("s_waitcnt lgkmcnt(0)")
        a("s_barrier")
        a(f"ds_read_b128 v[120:123], v7 offset:{L_SA}")
        a("s_waitcnt lgkmcnt(0)")
        for cb in range(10):
            a(f"v_mfma_f32_16x16x32_bf16 {vr(124+4*cb)}, v[120:123], {vr(216+4*cb)}, 0")
        for q in range(2):
            self.combine4([124 + 4 * (4 * q + k) for k in range(4)], 164 + 4 * q)
        for rr in range(4): a(f"v_permlane32_swap_b32 v{156+rr}, v{160+rr}")
        for rr in range(4): a(f"v_add_f32_dpp v{172+rr}, v{160+rr}, v{156+rr} row_ror:8 row_mask:0xf bank_mask:0xf")
        self.pub("L_pubf", [f"buffer_store_dwordx4 v[164:167], v3, {srd(srdWS)}, s{sT+2} offen",
                            f"buffer_store_dwordx4 v[168:171], v3, {srd(srdWS)}, s{sT+2} offen offset:1024"])
        a("s_mov_b32 exec_lo, 0x00ff00ff")
        a("s_mov_b32 exec_hi, 0x00ff00ff")
        self.pub("L_pubg", [f"buffer_store_dwordx4 v[172:175], v17, {srd(srdWS)}, s{sT+2} offen offset:2048"])
        a("s_mov_b64 exec, -1")
        self.stamp(12)
        a("L_noffn:")
        a(f"s_cmp_ge_u32 s{sT+10}, 5")
        a("s_cbranch_scc1 L_done")
        self.poll("L_pf", [f"buffer_load_dwordx4 {vr(64+4*i)}, v15, {srd(srdWS)}, s{sT+12+i} offen {pl}" for i in range(3)],
                  range(64, 76), 4)
        self.stamp(13)
        self.reduce24(64)
        a("v_cvt_pk_bf16_f32 v64, v64, v64")
        a("v_and_b32 v64, 0xffff0000, v64")
        a("v_add_f32 v14, v14, v64")
        a("v_cvt_pk_bf16_f32 v14, v14, v14")
        a("s_mov_b32 exec_lo, 0x00ff00ff")
        a("s_mov_b32 exec_hi, 0x00ff00ff")
        a(f"buffer_store_short v14, v12, {srd(srdOUT)}, 0 offen")
        a("s_mov_b64 exec, -1")
        a("L_done:")
        if o["stamps"]:
            a("s_waitcnt vmcnt(0)")
            self.stamp(14)
            a(f"s_lshl_b32 s{sT}, s2, 3")
            a(f"s_add_u32 s{sT}, s{sT}, s{sW}")
            a(f"s_lshl_b32 s{sT}, s{sT}, 6")
            a(f"s_add_u32 s{sT}, s{sT}, {STAMP}")
            for k in range(16): a(f"v_mov_b32 v{16+k}, s{sST+k}")
            a("v_mov_b32 v4, 0")
            a("s_mov_b64 exec, 1")
            for k in range(4): a(f"buffer_store_dwordx4 {vr(16+4*k)}, v4, {srd(srdWS)}, s{sT} offen offset:{16*k}")
        a("L_end:")
        a("s_endpgm")
        body, nn = fix_hazards(self.L)
        head = open("cdna_kernels/" + NAME + ".s.ref").read().split("; Override launch")[0] if False else ""
        out = [f"; @launch grid=(256,1,1) block=(512,1,1) lds={LDS_BYTES}",
               '.amdgcn_target "amdgcn-amd-amdhsa--gfx950"', ".text", f".globl {NAME}_kernel", ".p2align 8",
               f".type {NAME}_kernel,@function"]
        out += [s if s.endswith(":") else "    " + s for s in body]
        out += ['.section .rodata,"a"', ".p2align 6", f".amdhsa_kernel {NAME}_kernel",
                "  .amdhsa_next_free_vgpr 256", "  .amdhsa_next_free_sgpr 102", "  .amdhsa_accum_offset 256",
                "  .amdhsa_group_segment_fixed_size 0", "  .amdhsa_kernarg_size 88", "  .amdhsa_user_sgpr_count 2",
                "  .amdhsa_user_sgpr_kernarg_segment_ptr 1", "  .amdhsa_system_sgpr_workgroup_id_x 1",
                "  .amdhsa_float_denorm_mode_32 3", ".end_amdhsa_kernel"]
        return "\n".join(out) + "\n"

def gen(**o): return G(**o).gen()

if __name__ == "__main__":
    kw = {}
    for s in sys.argv[2:]:
        k, v = s.split("=")
        try: v = eval(v)
        except Exception: pass
        kw[k] = v
    open(sys.argv[1], "w").write(gen(**kw))
```

```python
import struct, sys
from asmlib import fix_hazards

NAME = "sequential_preLN__sliding_block_cached__dense_activation_silu__decode"
f2u = lambda x: struct.unpack("<I", struct.pack("<f", x))[0]
hx = lambda x: "0x%08x" % (x & 0xffffffff)

OBUF = 0
YBUF = OBUF + 96 * 1024
HBUF = YBUF + 24 * 20480
FBUF = HBUF + 8 * 2560
CLR_END = FBUF + 24 * 20480
CLR_PER_WG = 4352
QBUF = 256 * CLR_PER_WG
WS_USED = QBUF + 8 * 24 * 2048
STAMP = 2 << 20
XRS = 1296
L_XN = 0
L_Q = L_XN + 8 * XRS
L_SM = L_Q + 384
L_OP = L_SM + 64
SRS = 144
L_SA = L_OP + 4 * 3072
L_W = L_SA + 8 * SRS
LDS_BYTES = L_W + 81920

sX, sR, sH, sB, sW = 26, 27, 28, 29, 30
srdK, srdV, srdX, srdWt, srdWS, srdDBG, srdOUT = 32, 36, 40, 44, 48, 52, 56
sPlo, sPhi, sLOC, sRot, sOff, sCnt = 80, 81, 82, 83, 84, 85
sT = 60
sST = 86
SPIN = 100000

def srd(n): return f"s[{n}:{n+3}]"
def vr(a, n=4): return f"v[{a}:{a+n-1}]" if n > 1 else f"v{a}"

class G:
    def __init__(self, **o):
        self.o = dict(W=5, rot=11, burst3=6, burst4=3, ring=48, stamps=False, local=True, pollld="sc1",
                      hw=4, ow=4, wk0=8, W2=None, w2from=168, kvpol="nt", wpol="nt")
        self.o.update(o)
        self.L = []
        self.nst = 0

    def a(self, s): self.L.append(s)

    def stamp(self, k):
        if self.o["stamps"]:
            self.a(f"s_memrealtime s[{sT+18}:{sT+19}]")
            self.a("s_waitcnt lgkmcnt(0)")
            self.a(f"s_mov_b32 s{sST+k}, s{sT+18}")

    def mksrd(self, d, base, nbytes, off=None):
        a = self.a
        if off is None:
            a(f"s_mov_b32 s{d}, s{base}"); a(f"s_mov_b32 s{d+1}, s{base+1}")
        else:
            a(f"s_add_u32 s{d}, s{base}, {off}"); a(f"s_addc_u32 s{d+1}, s{base+1}, 0")
        a(f"s_mov_b32 s{d+2}, {nbytes}"); a(f"s_mov_b32 s{d+3}, 0x20000")

    def red_low3(self, op, v):
        a = self.a
        a(f"{op}_dpp v{v}, v{v}, v{v} quad_perm:[1,0,3,2] row_mask:0xf bank_mask:0xf")
        a(f"{op}_dpp v{v}, v{v}, v{v} quad_perm:[2,3,0,1] row_mask:0xf bank_mask:0xf")
        a(f"{op}_dpp v{v}, v{v}, v{v} row_half_mirror row_mask:0xf bank_mask:0xf")

    def red_high3(self, op, v, t):
        a = self.a
        a(f"{op}_dpp v{v}, v{v}, v{v} row_ror:8 row_mask:0xf bank_mask:0xf")
        a(f"v_mov_b32 v{t}, v{v}")
        a(f"v_permlane16_swap_b32 v{v}, v{t}")
        a(f"{op} v{v}, v{v}, v{t}")
        a(f"v_mov_b32 v{t}, v{v}")
        a(f"v_permlane32_swap_b32 v{v}, v{t}")
        a(f"{op} v{v}, v{v}, v{t}")

    def layernorm(self):
        a = self.a
        z = list(range(40, 50)); d = list(range(50, 60))
        a("v_add_f32 v60, v40, v41"); a("v_add_f32 v61, v42, v43"); a("v_add_f32 v62, v44, v45"); a("v_add_f32 v63, v46, v47")
        a("v_add_f32 v60, v60, v61"); a("v_add_f32 v62, v62, v63"); a("v_add_f32 v61, v48, v49")
        a("v_add_f32 v60, v60, v62"); a("v_add_f32 v60, v60, v61")
        self.red_low3("v_add_f32", 60); self.red_high3("v_add_f32", 60, 61)
        a(f"v_mul_f32 v60, {hx(f2u(1.0/640))}, v60")
        for i in range(10): a(f"v_sub_f32 v{d[i]}, v{z[i]}, v60")
        a("v_mul_f32 v61, v50, v50"); a("v_mul_f32 v62, v51, v51")
        for i in range(2, 10, 2):
            a(f"v_fmac_f32 v61, v{d[i]}, v{d[i]}"); a(f"v_fmac_f32 v62, v{d[i+1]}, v{d[i+1]}")
        a("v_cvt_pk_bf16_f32 v60, v60, v60")
        a("v_add_f32 v61, v61, v62")
        a("v_and_b32 v60, 0xffff0000, v60")
        fill = []
        for i in range(10): fill.append(f"v_sub_f32 v{d[i]}, v{z[i]}, v60")
        for i in range(5): fill.append(f"v_cvt_pk_bf16_f32 v{32+i}, v{d[2*i]}, v{d[2*i+1]}")
        for i in range(5):
            fill.append(f"v_lshlrev_b32 v{d[2*i]}, 16, v{32+i}"); fill.append(f"v_and_b32 v{d[2*i+1]}, 0xffff0000, v{32+i}")
        chain = ["v_add_f32_dpp v61, v61, v61 quad_perm:[1,0,3,2] row_mask:0xf bank_mask:0xf",
                 "v_add_f32_dpp v61, v61, v61 quad_perm:[2,3,0,1] row_mask:0xf bank_mask:0xf",
                 "v_add_f32_dpp v61, v61, v61 row_half_mirror row_mask:0xf bank_mask:0xf",
                 "v_add_f32_dpp v61, v61, v61 row_ror:8 row_mask:0xf bank_mask:0xf\nv_mov_b32 v62, v61",
                 "v_permlane16_swap_b32 v61, v62\nv_add_f32 v61, v61, v62\nv_mov_b32 v62, v61",
                 "v_permlane32_swap_b32 v61, v62\nv_add_f32 v61, v61, v62\n" + f"v_mul_f32 v61, {hx(f2u(1.0/640))}, v61\n"
                 "v_cvt_pk_bf16_f32 v61, v61, v61\nv_and_b32 v61, 0xffff0000, v61\n"
                 f"v_add_f32 v61, {hx(f2u(1e-5))}, v61\nv_cvt_pk_bf16_f32 v61, v61, v61\nv_and_b32 v61, 0xffff0000, v61\nv_sqrt_f32 v61, v61",
                 "v_cvt_pk_bf16_f32 v61, v61, v61\nv_and_b32 v61, 0xffff0000, v61\nv_rcp_f32 v61, v61"]
        for c in chain:
            for _ in range(2):
                if fill: a(fill.pop(0))
            for s in c.split("\n"): a(s)
        for s in fill: a(s)
        for i in range(10): a(f"v_mul_f32 v{d[i]}, v{d[i]}, v61")
        for i in range(5): a(f"v_cvt_pk_bf16_f32 v{32+i}, v{d[2*i]}, v{d[2*i+1]}")

    def transpose(self, raw, dst):
        for m in range(8):
            for d in range(4):
                self.a(f"v_perm_b32 v{dst+4*m+d}, v{raw+4*(2*d+1)+(m>>1)}, v{raw+4*(2*d)+(m>>1)}, s{sPhi if m & 1 else sPlo}")

    def combine4(self, accs, dst):
        a = self.a
        for rr in range(4):
            a(f"v_permlane32_swap_b32 v{accs[0]+rr}, v{accs[2]+rr}")
            a(f"v_permlane32_swap_b32 v{accs[1]+rr}, v{accs[3]+rr}")
        for rr in range(4):
            a(f"v_add_f32_dpp v{dst+rr}, v{accs[2]+rr}, v{accs[0]+rr} row_ror:8 row_mask:0xf bank_mask:0x3")
        for rr in range(4):
            a(f"v_add_f32_dpp v{dst+rr}, v{accs[1]+rr}, v{accs[3]+rr} row_ror:8 row_mask:0xf bank_mask:0xc")

    def poll(self, name, loads, regs, tmp):
        a = self.a
        a(f"s_mov_b32 s{sCnt}, {SPIN}")
        a(f"{name}:")
        for s in loads: a(s)
        a(f"s_sub_u32 s{sCnt}, s{sCnt}, 1")
        a(f"s_cbranch_scc1 {name}_x")
        a("s_waitcnt vmcnt(0)")
        regs = list(regs)
        a(f"v_max3_u32 v{tmp}, v{regs[0]}, v{regs[1]}, v{regs[2]}")
        regs = regs[3:]
        while len(regs) >= 2:
            a(f"v_max3_u32 v{tmp}, v{tmp}, v{regs[0]}, v{regs[1]}"); regs = regs[2:]
        if regs: a(f"v_max_u32 v{tmp}, v{tmp}, v{regs[0]}")
        a(f"v_cmp_eq_u32 vcc, -1, v{tmp}")
        a(f"s_cbranch_vccnz {name}")
        a(f"{name}_x:")
        a("s_waitcnt vmcnt(0)")

    def pub(self, name, stores):
        a = self.a
        if not self.o["local"]:
            for s in stores: a(s + " sc1")
            return
        a(f"s_cmp_eq_u32 s{sLOC}, 1")
        a(f"s_cbranch_scc1 {name}_l")
        for s in stores: a(s + " sc1")
        a(f"s_branch {name}_e")
        a(f"{name}_l:")
        for s in stores: a(s)
        a(f"{name}_e:")

    def reduce24(self, z):
        a = self.a
        for rr in range(4): a(f"v_add_f32 v{z+rr}, v{z+rr}, v{z+4+rr}")
        for rr in range(4): a(f"v_add_f32 v{z+rr}, v{z+rr}, v{z+8+rr}")
        a(f"v_permlane32_swap_b32 v{z}, v{z+2}")
        a(f"v_permlane32_swap_b32 v{z+1}, v{z+3}")
        a(f"v_add_f32 v{z}, v{z}, v{z+2}")
        a(f"v_add_f32 v{z+1}, v{z+1}, v{z+3}")
        a(f"v_permlane16_swap_b32 v{z}, v{z+1}")
        a(f"v_add_f32 v{z}, v{z}, v{z+1}")
        a(f"v_add_f32_dpp v{z}, v{z}, v{z} row_ror:8 row_mask:0xf bank_mask:0xf")

    def read_frags(self, dst):
        a = self.a
        a(f"s_lshl_b32 s{sT}, s{sW}, 10")
        a(f"s_add_u32 s{sT}, s{sT}, {L_W}")
        a(f"v_add_u32 v4, s{sT}, v3")
        a("v_add_u32 v5, 0x10000, v4")
        for k in range(10):
            if k < 8: a(f"ds_read_b128 {vr(dst+4*k)}, v4 offset:{8192*k}")
            else: a(f"ds_read_b128 {vr(dst+4*k)}, v5 offset:{8192*(k-8)}")

    def stream_setup(self):
        self.issued = 0; self.done = 0
        self.free = list(range(self.o["ring"])); self.slot = {}
        self.maxslot = self.o["ring"]

    def wait_out(self, n):
        if self.issued - self.done > n:
            self.a(f"s_waitcnt vmcnt({n})"); self.done = self.issued - n

    def issue(self, throttle=True):
        i = self.issued
        if i >= 192: return
        W = self.o["W"]
        if self.o["W2"] and i >= self.o["w2from"]: W = self.o["W2"]
        if throttle: self.wait_out(W - 1)
        self.free.sort()
        s = self.free.pop(0); assert s < self.maxslot, (i, s)
        self.slot[i] = s
        t = i % 3
        if t == 0 and i > 0:
            self.a(f"s_add_u32 s{sOff}, s{sOff}, 3072")
            self.a(f"s_cmp_eq_u32 s{sOff}, 98304")
            self.a(f"s_cselect_b32 s{sOff}, 0, s{sOff}")
        r = 64 + 4 * s
        self.a(f"buffer_load_dwordx4 {vr(r)}, v12, {srd(srdK if i < 96 else srdV)}, s{sOff} offen offset:{128*t} {self.o['kvpol']}")
        self.issued += 1

    def consumeK(self, g):
        a = self.a
        self.wait_out(self.issued - 3 * (g + 1))
        base = [64 + 4 * self.slot[3 * g + t] for t in range(3)]
        acc = [32 + g, 13, 14]
        for d in range(4):
            for t in range(3):
                c = "0" if d == 0 else f"v{acc[t]}"
                a(f"v_dot2_f32_bf16 v{acc[t]}, v{base[t]+d}, v{16+4*t+d}, {c}")
        for t in range(3): self.free.append(self.slot.pop(3 * g + t))
        a("v_add_f32 v13, v13, v14")
        a(f"v_add_f32 v{32+g}, v{32+g}, v13")
        self.red_low3("v_add_f32", 32 + g)
        if g & 1:
            p, q = 32 + g - 1, 32 + g
            a(f"v_cvt_pk_bf16_f32 v13, v{p}, v{q}")
            a(f"v_lshlrev_b32 v{p}, 16, v13"); a(f"v_and_b32 v{q}, 0xffff0000, v13")
            sc = hx(f2u(192 ** -0.5))
            a(f"v_mul_f32 v{p}, {sc}, v{p}"); a(f"v_mul_f32 v{q}, {sc}, v{q}")
            a(f"v_cvt_pk_bf16_f32 v13, v{p}, v{q}")
            a(f"v_lshlrev_b32 v{p}, 16, v13"); a(f"v_and_b32 v{q}, 0xffff0000, v13")
            if g == 1: a(f"v_max_f32 v15, v{p}, v{q}")
            else: a(f"v_max3_f32 v15, v15, v{p}, v{q}")

    def consumeV(self, g, fine=False):
        a = self.a
        A = 4 if g & 1 else 8
        for d in range(4): a(f"v_and_b32 v{A+d}, v{32+g}, v{28+d}")
        i0 = 96 + 3 * g
        if not fine: self.wait_out(self.issued - (i0 + 3))
        for t in range(3):
            if fine: self.wait_out(self.issued - (i0 + t + 1))
            s = self.slot.pop(i0 + t); self.free.append(s)
            c = "0" if g == 0 else vr(16 + 4 * t)
            a(f"v_mfma_f32_16x16x32_bf16 {vr(16+4*t)}, {vr(A)}, {vr(64+4*s)}, {c}")

    def gen(self):
        a = self.a; o = self.o
        W = o["W"]
        a(f"{NAME}_kernel:")
        a("s_cmp_ge_u32 s2, 256")
        a("s_cbranch_scc1 L_end")
        a("s_load_dwordx16 s[4:19], s[0:1], 0")
        a("s_load_dwordx4 s[20:23], s[0:1], 64")
        a("s_load_dwordx2 s[24:25], s[0:1], 80")
        if o["stamps"]:
            a(f"s_memrealtime s[{sST}:{sST+1}]")
        a("v_lshrrev_b32 v4, 6, v0")
        a("v_and_b32 v0, 63, v0")
        a(f"s_and_b32 s{sX}, s2, 7")
        a(f"v_readfirstlane_b32 s{sW}, v4")
        a(f"s_lshr_b32 s{sR}, s2, 3")
        a(f"s_and_b32 s{sT}, s{sR}, 3")
        a(f"s_lshl2_add_u32 s{sH}, s{sX}, s{sT}")
        a(f"s_lshr_b32 s{sB}, s{sR}, 2")
        a("v_and_b32 v1, 7, v0")
        a("v_lshlrev_b32 v1, 4, v1")
        a("v_lshlrev_b32 v3, 4, v0")
        a("v_lshrrev_b32 v6, 3, v0")
        a(f"s_mul_i32 s{sT+1}, s{sW}, 1280")
        a("v_lshlrev_b32 v5, 2, v0")
        a(f"s_lshl_b32 s{sT}, s{sB}, 5")
        a(f"s_add_u32 s{sT}, s{sT}, s{sH}")
        a(f"s_mul_i32 s{sT}, s{sT}, 1572864")
        a(f"s_add_u32 s{sT}, s{sT}, {3072*384}")
        a(f"s_mul_i32 s{sOff}, s2, {o['rot']}")
        a(f"s_and_b32 s{sOff}, s{sOff}, 31")
        a(f"s_mul_i32 s{sOff}, s{sOff}, 3072")
        a(f"s_mul_i32 s{sT+2}, s{sW}, 98304")
        a("v_mul_u32_u24 v12, 384, v6")
        a(f"v_add3_u32 v12, v12, v1, s{sT+2}")
        a("s_waitcnt lgkmcnt(0)")
        if o["stamps"]:
            for k in range(1, 16): a(f"s_mov_b32 s{sST+k}, 0")
        self.mksrd(srdX, 4, 10240)
        self.mksrd(srdK, 6, 393216, f"s{sT}")
        a(f"buffer_load_dwordx4 v[32:35], v3, {srd(srdX)}, s{sT+1} offen")
        a(f"buffer_load_dword v36, v5, {srd(srdX)}, s{sT+1} offen offset:1024")
        a(f"s_cmp_ge_u32 s{sW}, 4")
        a("s_cbranch_scc1 L_hpro")
        self.stream_setup()
        for _ in range(W): self.issue(throttle=False)
        a("L_hpro:")
        self.mksrd(srdV, 8, 393216, f"s{sT}")
        self.mksrd(srdWS, 24, WS_USED if not o["stamps"] else 4 << 20)
        self.mksrd(srdWt, 10, 7864320)
        a("v_lshrrev_b32 v2, 4, v0")
        a("v_and_b32 v7, 1, v6")
        a("v_lshl_add_u32 v2, v7, 2, v2")
        a(f"s_mov_b32 s{sPlo}, 0x05040100")
        a(f"s_mov_b32 s{sPhi}, 0x07060302")
        a(f"s_cmp_ge_u32 s{sW}, 4")
        a("s_cbranch_scc1 L_hpro2")
        a(f"s_waitcnt vmcnt({W})")
        a("s_branch L_ln1")
        a("L_hpro2:")
        a(f"s_cmp_eq_u32 s{sW}, 5")
        a("s_cbranch_scc1 L_clear")
        a(f"s_cmp_lg_u32 s{sW}, 4")
        a("s_cbranch_scc1 L_w0")
        a(f"s_cmp_ge_u32 s{sR}, 24")
        a("s_cbranch_scc1 L_w0")
        a(f"s_cmp_ge_u32 s{sR}, 12")
        a(f"s_cselect_b32 s{sT+3}, 1, 0")
        a(f"s_mul_i32 s{sT+4}, s{sT+3}, 12")
        a(f"s_sub_u32 s{sT+4}, s{sR}, s{sT+4}")
        a(f"s_mul_i32 s{sT+5}, s{sT+3}, {320*12288}")
        a(f"s_mul_i32 s{sT+6}, s{sX}, 1536")
        a(f"s_add_u32 s{sT+5}, s{sT+5}, s{sT+6}")
        a(f"s_lshl_b32 s{sT+6}, s{sT+4}, 7")
        a(f"s_add_u32 s{sT+5}, s{sT+5}, s{sT+6}")
        a(f"v_mul_u32_u24 v7, {8*12288}, v2")
        a("v_add_u32 v7, v7, v1")
        a(f"s_movk_i32 s{sT+6}, 12288")
        a(f"s_mov_b32 s{sT+7}, {57*12288}")
        for kb in range(5):
            for e in range(8):
                a(f"buffer_load_dwordx4 {vr(64+32*kb+4*e)}, v7, {srd(srdWt)}, s{sT+5} offen {o['wpol']}")
                if kb * 8 + e < 39: a(f"s_add_u32 s{sT+5}, s{sT+5}, s{sT+6 if e < 7 else sT+7}")
        a("s_waitcnt vmcnt(40)")
        a("s_branch L_ln1")
        a("L_clear:")
        for k in range(4): a(f"v_mov_b32 v{8+k}, -1")
        a(f"s_mul_i32 s{sT+3}, s2, {CLR_PER_WG}")
        for k in range(4): a(f"buffer_store_dwordx4 v[8:11], v3, {srd(srdWS)}, s{sT+3} offen offset:{1024*k} sc1")
        a(f"s_add_u32 s{sT+3}, s{sT+3}, 4096")
        a("s_mov_b64 exec, 0xffff")
        a(f"buffer_store_dwordx4 v[8:11], v3, {srd(srdWS)}, s{sT+3} offen sc1")
        a("s_mov_b64 exec, -1")
        a("L_w0:")
        a("s_waitcnt vmcnt(0)")
        a("L_ln1:")
        for i in range(5):
            a(f"v_lshlrev_b32 v{40+2*i}, 16, v{32+i}"); a(f"v_and_b32 v{41+2*i}, 0xffff0000, v{32+i}")
        self.layernorm()
        a(f"s_mul_i32 s{sT+8}, s{sW}, {XRS}")
        a(f"v_add_u32 v8, s{sT+8}, v3")
        a(f"v_add_u32 v9, s{sT+8}, v5")
        a(f"ds_write_b128 v8, v[32:35] offset:{L_XN}")
        a(f"ds_write_b32 v9, v36 offset:{L_XN+1024}")
        a("s_waitcnt lgkmcnt(0)")
        a("s_barrier")
        self.stamp(1)
        a(f"s_cmp_ge_u32 s{sW}, 4")
        a("s_cbranch_scc1 L_helper")

        a("v_and_b32 v4, 1, v0")
        a("v_lshlrev_b32 v4, 4, v4")
        a("v_mov_b32 v7, 0xffff")
        a("v_lshlrev_b32 v4, v4, v7")
        a("v_bfe_u32 v7, v0, 1, 2")
        for d in range(4):
            a(f"v_cmp_eq_u32 vcc, {d}, v7")
            a(f"v_cndmask_b32 v{28+d}, 0, v4, vcc")
        while self.issued < o["ring"]: self.issue()
        self.stamp(2)
        a("s_barrier")
        self.stamp(3)
        for t in range(3): a(f"ds_read_b128 {vr(16+4*t)}, v1 offset:{L_Q+128*t}")
        a("s_waitcnt lgkmcnt(0)")
        g = 0
        while g < 32:
            lag = self.issued // 3 - g
            n = 2 if lag > 3 else 1
            for _ in range(n):
                if g < 32: self.consumeK(g); g += 1
            if g < 32:
                for _ in range(3): self.issue()
        self.maxslot = 28
        assert all(s < 28 for s in self.slot.values())
        self.red_high3("v_max_f32", 15, 13)
        a(f"s_lshl_b32 s{sT}, s{sW}, 2")
        a(f"v_mov_b32 v14, s{sT}")
        a("s_mov_b64 exec, 1")
        a(f"ds_write_b32 v14, v15 offset:{L_SM}")
        a("s_mov_b64 exec, -1")
        for _ in range(o["burst3"]): self.issue(throttle=False)
        a("s_waitcnt lgkmcnt(0)")
        self.stamp(4)
        a("s_barrier")
        self.stamp(5)
        a("v_mov_b32 v13, 0")
        a(f"ds_read_b128 v[8:11], v13 offset:{L_SM}")
        a(f"ds_read_b32 v16, v13 offset:{L_SM+32}")
        self.read_frags(176)
        a("s_waitcnt lgkmcnt(10)")
        a(f"v_readfirstlane_b32 s{sLOC}, v16")
        a("v_max3_f32 v15, v8, v9, v10")
        a("v_max_f32 v15, v15, v11")
        l2e = hx(f2u(1.4426950408889634))
        for g in range(32):
            a(f"v_sub_f32 v{32+g}, v{32+g}, v15")
            a(f"v_mul_f32 v{32+g}, {l2e}, v{32+g}")
            a(f"v_exp_f32 v{32+g}, v{32+g}")
            if g == 2: a("v_add_f32 v13, v32, v33")
            elif g > 2: a(f"v_add_f32 v13, v13, v{32+g-1}")
            if g % 11 == 10: self.issue()
        a("v_add_f32 v13, v13, v63")
        self.red_high3("v_add_f32", 13, 15)
        a("s_mov_b64 exec, 1")
        a(f"ds_write_b32 v14, v13 offset:{L_SM+16}")
        a("s_mov_b64 exec, -1")
        for _ in range(o["burst4"]): self.issue(throttle=False)
        a("s_waitcnt lgkmcnt(0)")
        a("s_barrier")
        self.stamp(6)
        a("v_mov_b32 v13, 0")
        a(f"ds_read_b128 v[8:11], v13 offset:{L_SM+16}")
        a("s_waitcnt lgkmcnt(0)")
        a("v_add_f32 v8, v8, v9"); a("v_add_f32 v10, v10, v11"); a("v_add_f32 v13, v8, v10")
        a("v_rcp_f32 v13, v13")
        for g in range(32):
            a(f"v_mul_f32 v{32+g}, v{32+g}, v13")
            a(f"v_cvt_pk_bf16_f32 v{32+g}, v{32+g}, v{32+g}")
            if g % 16 == 15: self.issue()
        while self.issued % 3: self.issue()
        g = 0
        while g < 32:
            lag = (self.issued - 96) // 3 - g
            if self.issued >= 192:
                self.consumeV(g, fine=True); g += 1
                continue
            Wc = o["W2"] if (o["W2"] and self.issued >= o["w2from"]) else W
            keep = (Wc + 2) // 3 + 1
            n = 2 if lag > keep else (1 if lag == keep else 0)
            for _ in range(n): self.consumeV(g); g += 1
            for _ in range(3): self.issue()
        a(f"s_mul_i32 s{sT}, s{sW}, 3072")
        a(f"v_add_u32 v4, s{sT}, v3")
        for t in range(3): a(f"ds_write_b128 v4, {vr(16+4*t)} offset:{L_OP+1024*t}")
        a("s_waitcnt lgkmcnt(0)")
        self.stamp(7)
        a("s_barrier")
        a(f"s_cmp_lg_u32 s{sX}, 0")
        a("s_cbranch_scc1 L_done")
        a(f"s_mov_b32 s{sT+10}, s{sW}")
        a("s_branch L_grp0")

        a("L_helper:")
        self.mksrd(srdDBG, 22, 256)
        a(f"s_cmp_lg_u32 s{sW}, 4")
        a("s_cbranch_scc1 L_h123")
        a(f"s_cmp_ge_u32 s{sR}, 24")
        a("s_cbranch_scc1 L_qsig")
        a("v_and_b32 v4, 7, v0")
        a(f"v_mul_u32_u24 v4, {XRS}, v4")
        a("v_lshl_add_u32 v4, v2, 4, v4")
        a(f"s_mul_i32 s{sT+5}, s{sT+3}, 640")
        a(f"v_add_u32 v4, s{sT+5}, v4")
        for kb in range(5): a(f"ds_read_b128 {vr(12+4*kb)}, v4 offset:{L_XN+128*kb}")
        for kb in range(5):
            a(f"s_waitcnt vmcnt({8*(4-kb)})")
            self.transpose(64 + 32 * kb, 224)
            if kb == 0: a("s_waitcnt lgkmcnt(0)")
            for m in range(8):
                c = "0" if kb == 0 else vr(32 + 4 * m)
                a(f"v_mfma_f32_16x16x32_bf16 {vr(32+4*m)}, {vr(12+4*kb)}, {vr(224+4*m)}, {c}")
        for q in range(2):
            self.combine4([32 + 4 * (4 * q + k) for k in range(4)], 4 + 4 * q)
        a(f"s_mul_i32 s{sT+5}, s{sX}, 24")
        a(f"s_add_u32 s{sT+5}, s{sT+5}, s{sR}")
        a(f"s_lshl_b32 s{sT+5}, s{sT+5}, 11")
        a(f"s_add_u32 s{sT+5}, s{sT+5}, {QBUF}")
        for q in range(2): a(f"buffer_store_dwordx4 {vr(4+4*q)}, v3, {srd(srdWS)}, s{sT+5} offen offset:{1024*q} sc1")
        a("s_waitcnt vmcnt(0)")
        a("L_qsig:")
        self.stamp(2)
        a(f"s_getreg_b32 s{sT+5}, hwreg(HW_REG_XCC_ID, 0, 4)")
        a(f"s_mul_i32 s{sT+6}, s{sT+5}, s{sT+5}")
        a(f"s_lshl_b32 s{sT+6}, s{sT+6}, 18")
        a(f"s_lshl_b32 s{sT+5}, s{sT+5}, 8")
        a(f"s_add_u32 s{sT+5}, s{sT+5}, s{sT+6}")
        a(f"s_add_u32 s{sT+5}, s{sT+5}, 1")
        a(f"v_mov_b32 v12, s{sT+5}")
        a(f"s_lshl_b32 s{sT+6}, s{sX}, 5")
        a(f"v_mov_b32 v13, s{sT+6}")
        a("s_mov_b64 exec, 1")
        a(f"buffer_atomic_add v12, v13, {srd(srdDBG)}, 0 offen sc1")
        a(f"s_mov_b32 s{sCnt}, {SPIN}")
        a("L_qwait:")
        a(f"buffer_load_dword v14, v13, {srd(srdDBG)}, 0 offen sc1")
        a(f"s_sub_u32 s{sCnt}, s{sCnt}, 1")
        a("s_cbranch_scc1 L_qwait_x")
        a("s_waitcnt vmcnt(0)")
        a("v_and_b32 v15, 0xff, v14")
        a("v_cmp_gt_u32 vcc, 32, v15")
        a("s_cbranch_vccnz L_qwait")
        a("L_qwait_x:")
        a("s_waitcnt vmcnt(0)")
        a("s_mov_b64 exec, -1")
        a("v_lshrrev_b32 v8, 4, v0")
        a("v_lshlrev_b32 v8, 9, v8")
        a("v_and_b32 v9, 8, v0")
        a("v_lshl_add_u32 v8, v9, 4, v8")
        a("v_add_u32 v8, v8, v1")
        a(f"s_and_b32 s{sT+6}, s{sR}, 3")
        a(f"s_mul_i32 s{sT+6}, s{sT+6}, 3")
        a(f"s_mul_i32 s{sT+7}, s{sX}, 24")
        a(f"s_add_u32 s{sT+6}, s{sT+6}, s{sT+7}")
        a(f"s_lshl_b32 s{sT+6}, s{sT+6}, 11")
        a(f"s_lshr_b32 s{sT+7}, s{sB}, 2")
        a(f"s_lshl_b32 s{sT+7}, s{sT+7}, 8")
        a(f"s_add_u32 s{sT+6}, s{sT+6}, s{sT+7}")
        a(f"s_and_b32 s{sT+7}, s{sB}, 3")
        a(f"s_lshl2_add_u32 s{sT+6}, s{sT+7}, s{sT+6}")
        a(f"s_add_u32 s{sT+6}, s{sT+6}, {QBUF}")
        for k in range(6):
            rb, t = divmod(k, 3)
            a(f"s_add_u32 s{sT+7}, s{sT+6}, {rb*12*2048 + t*2048}")
            a(f"buffer_load_dword v{16+k}, v8, {srd(srdWS)}, s{sT+7} offen sc1")
        a(f"v_readfirstlane_b32 s{sT+7}, v14")
        a(f"s_lshl_b32 s{sT+5}, s{sT+5}, 5")
        a(f"s_cmp_eq_u32 s{sT+5}, s{sT+7}")
        a(f"s_cselect_b32 s{sLOC}, 1, 0")
        a(f"v_mov_b32 v10, s{sLOC}")
        a("v_mov_b32 v11, 0")
        a("v_lshrrev_b32 v9, 3, v0")
        a("v_lshl_add_u32 v9, v9, 1, v1")
        a(f"ds_write_b32 v11, v10 offset:{L_SM+32}")
        a("s_waitcnt vmcnt(0)")
        for t in range(3):
            a(f"v_add_f32 v{16+t}, v{16+t}, v{19+t}")
            a(f"v_cvt_pk_bf16_f32 v{16+t}, v{16+t}, v{16+t}")
            a(f"ds_write_b16 v9, v{16+t} offset:{L_Q+128*t}")
        a("s_waitcnt lgkmcnt(0)")
        self.stamp(3)
        a("s_barrier")
        a("s_barrier")
        self.read_frags(176)
        a("s_waitcnt lgkmcnt(0)")
        a("s_barrier")
        a(f"s_cmp_ge_u32 s{sR}, 30")
        a("s_cbranch_scc1 L_allwait0")
        self.mksrd(srdWt, 12, 7864320)
        a(f"s_mul_i32 s{sT+3}, s{sR}, 26")
        a(f"s_lshr_b32 s{sT+3}, s{sT+3}, 8")
        a(f"s_mul_i32 s{sT+4}, s{sT+3}, 10")
        a(f"s_sub_u32 s{sT+4}, s{sR}, s{sT+4}")
        a(f"s_mul_i32 s{sT+5}, s{sX}, 3")
        a(f"s_add_u32 s{sT+3}, s{sT+3}, s{sT+5}")
        a(f"s_mul_i32 s{sT+5}, s{sT+3}, {256*1280}")
        a(f"s_lshl_b32 s{sT+6}, s{sT+4}, 7")
        a(f"s_add_u32 s{sT+5}, s{sT+5}, s{sT+6}")
        a(f"v_mul_u32_u24 v7, {8*1280}, v2")
        a("v_add_u32 v7, v7, v1")
        ow = o["ow"]
        for kb in range(4):
            for e in range(8):
                if e % 4 == 0: a(f"s_add_u32 s{sT+6}, s{sT+5}, {(64*kb + e) * 1280}")
                if e >= ow: a(f"s_waitcnt vmcnt({ow-1})")
                a(f"buffer_load_dwordx4 {vr(216+4*e)}, v7, {srd(srdWt)}, s{sT+6} offen offset:{(e%4)*1280} {o['wpol']}")
            a("s_waitcnt vmcnt(0)")
            self.transpose(216, 48 + 32 * kb)
        a("L_allwait0:")
        a("v_lshlrev_b32 v13, 5, v0")
        a("s_mov_b64 exec, 0xff")
        a(f"s_mov_b32 s{sCnt}, {SPIN}")
        a("L_allwait:")
        a(f"buffer_load_dword v14, v13, {srd(srdDBG)}, 0 offen sc1")
        a(f"s_sub_u32 s{sCnt}, s{sCnt}, 1")
        a("s_cbranch_scc1 L_allwait_x")
        a("s_waitcnt vmcnt(0)")
        a("v_and_b32 v15, 0xff, v14")
        a("v_cmp_gt_u32 vcc, 32, v15")
        a("s_cbranch_vccnz L_allwait")
        a("L_allwait_x:")
        a("s_waitcnt vmcnt(0)")
        a("s_mov_b64 exec, -1")
        a(f"s_lshl_b32 s{sT+6}, s{sT+3}, 12")
        a(f"s_mul_i32 s{sT+7}, s{sT+3}, 20480")
        a(f"s_lshl_b32 s{sT+8}, s{sT+4}, 11")
        a(f"s_add_u32 s{sT+7}, s{sT+7}, s{sT+8}")
        a(f"s_add_u32 s{sT+7}, s{sT+7}, {YBUF}")
        self.stamp(6)
        a("s_barrier")
        a(f"s_cmp_ge_u32 s{sR}, 30")
        a("s_cbranch_scc1 L_h0done")
        self.poll("L_po", [f"buffer_load_dwordx4 {vr(16+4*kb)}, v3, {srd(srdWS)}, s{sT+6} offen offset:{OBUF+1024*kb} {o['pollld']}" for kb in range(4)],
                  range(16, 32), 4)
        self.stamp(8)
        for m in range(8):
            for kb in range(4):
                c = "0" if kb == 0 else vr(216 + 4 * m)
                a(f"v_mfma_f32_16x16x32_bf16 {vr(216+4*m)}, {vr(16+4*kb)}, {vr(48+32*kb+4*m)}, {c}")
            if m == 5:
                self.combine4([216 + 4 * k for k in range(4)], 32)
                a(f"buffer_store_dwordx4 v[32:35], v3, {srd(srdWS)}, s{sT+7} offen sc1")
        self.combine4([216 + 4 * (4 + k) for k in range(4)], 36)
        a(f"buffer_store_dwordx4 v[36:39], v3, {srd(srdWS)}, s{sT+7} offen offset:1024 sc1")
        self.stamp(9)
        a("L_h0done:")
        a(f"s_cmp_lg_u32 s{sX}, 0")
        a("s_cbranch_scc1 L_done")
        a(f"s_mov_b32 s{sT+10}, 7")
        a("s_branch L_grp0")

        a("L_h123:")
        wk0 = o["wk0"]
        a(f"s_sub_u32 s{sT+3}, s{sR}, {wk0}")
        a(f"s_cmp_lt_u32 s{sT+3}, 24")
        a(f"s_cselect_b32 s{sT+4}, 1, 0")
        a(f"s_cmp_eq_u32 s{sX}, 0")
        a(f"s_cselect_b32 s{sT+4}, s{sT+4}, 0")
        a(f"s_sub_u32 s{sT+5}, s{sW}, 5")
        a("s_barrier")
        hw = o["hw"]
        def stage(tag, ptr, nbytes, rstride, base_expr, blkstep):
            a(f"s_cmp_eq_u32 s{sT+4}, 0")
            a(f"s_cbranch_scc1 {tag}_e")
            self.mksrd(srdWt, ptr, nbytes)
            a(f"v_mul_u32_u24 v7, {rstride}, v2")
            a("v_add_u32 v7, v7, v1")
            a(f"s_mul_i32 s{sT+6}, s{sT+3}, {base_expr}")
            a(f"s_mov_b32 s{sT+7}, s{sT+5}")
            a(f"{tag}:")
            a(f"s_mul_i32 s{sT+8}, s{sT+7}, {blkstep}")
            a(f"s_add_u32 s{sT+8}, s{sT+8}, s{sT+6}")
            for e in range(8):
                if e >= hw: a(f"s_waitcnt vmcnt({hw-1})")
                a(f"buffer_load_dwordx4 {vr(64+4*e)}, v7, {srd(srdWt)}, s{sT+8} offen {o['wpol']}")
                if e < 7: a(f"s_add_u32 s{sT+8}, s{sT+8}, {8*rstride}")
            a(f"s_lshl_b32 s{sT+8}, s{sT+7}, 13")
            a(f"s_add_u32 s{sT+8}, s{sT+8}, {L_W}")
            a(f"v_add_u32 v8, s{sT+8}, v3")
            a("s_waitcnt vmcnt(0) lgkmcnt(0)")
            self.transpose(64, 128)
            for m in range(8): a(f"ds_write_b128 v8, {vr(128+4*m)} offset:{1024*m}")
            a(f"s_add_u32 s{sT+7}, s{sT+7}, 3")
            a(f"s_cmp_lt_u32 s{sT+7}, 10")
            a(f"s_cbranch_scc1 {tag}")
            a("s_waitcnt lgkmcnt(0)")
            a(f"{tag}_e:")
        stage("L_st1", 16, 1966080, 3072, 128, 64 * 3072)
        self.stamp(4)
        a("s_barrier")
        a("v_mov_b32 v13, 0")
        a(f"ds_read_b32 v16, v13 offset:{L_SM+32}")
        self.read_frags(176)
        a("s_waitcnt lgkmcnt(0)")
        a(f"v_readfirstlane_b32 s{sLOC}, v16")
        a("s_barrier")
        stage("L_st2", 18, 1966080, 1280, 64 * 1280, 128)
        a("v_bfe_u32 v8, v0, 2, 1")
        a("v_lshl_add_u32 v8, v8, 4, v6")
        a("v_and_b32 v9, 3, v0")
        a("v_lshlrev_b32 v9, 2, v9")
        a("v_lshl_add_u32 v8, v8, 4, v9")
        a(f"s_lshl_b32 s{sT+6}, s{sT+5}, 10")
        a(f"s_add_u32 s{sT+6}, s{sT+6}, {L_OP}")
        a(f"v_add_u32 v8, s{sT+6}, v8")
        a("v_add_u32 v9, 640, v8")
        a("v_and_b32 v10, 3, v6")
        a("v_lshlrev_b32 v10, 8, v10")
        a("v_lshrrev_b32 v11, 5, v0")
        a("v_lshl_add_u32 v10, v11, 7, v10")
        a("v_and_b32 v11, 7, v0")
        a("v_lshl_add_u32 v10, v11, 1, v10")
        a(f"s_mul_i32 s{sT+6}, s{sH}, 3")
        a(f"s_add_u32 s{sT+6}, s{sT+6}, s{sT+5}")
        a(f"s_lshl_b32 s{sT+6}, s{sT+6}, 10")
        a(f"s_lshl4_add_u32 s{sT+6}, s{sB}, s{sT+6}")
        self.stamp(6)
        a("s_barrier")
        a("ds_read2st64_b32 v[16:17], v8 offset0:0 offset1:12")
        a("ds_read2st64_b32 v[18:19], v9 offset0:0 offset1:12")
        a("ds_read2st64_b32 v[20:21], v8 offset0:24 offset1:36")
        a("ds_read2st64_b32 v[22:23], v9 offset0:24 offset1:36")
        a("s_waitcnt lgkmcnt(2)")
        a("v_add_f32 v16, v16, v17"); a("v_add_f32 v18, v18, v19")
        a("s_waitcnt lgkmcnt(0)")
        a("v_add_f32 v20, v20, v21"); a("v_add_f32 v22, v22, v23")
        a("v_add_f32 v16, v16, v18"); a("v_add_f32 v20, v20, v22")
        a("v_add_f32 v16, v16, v20")
        a("v_mov_b32_dpp v17, v16 quad_perm:[1,0,3,2] row_mask:0xf bank_mask:0xf")
        a("v_cvt_pk_bf16_f32 v16, v16, v17")
        a("s_mov_b32 exec_lo, 0x55555555")
        a("s_mov_b32 exec_hi, 0x55555555")
        self.pub("L_pubo", [f"buffer_store_dword v16, v10, {srd(srdWS)}, s{sT+6} offen offset:{OBUF}"])
        a("s_mov_b64 exec, -1")
        self.stamp(8)
        a(f"s_cmp_lg_u32 s{sX}, 0")
        a("s_cbranch_scc1 L_done")
        a(f"s_cmp_eq_u32 s{sW}, 7")
        a(f"s_cselect_b32 s{sT+10}, 4, 7")

        a("L_grp0:")
        a(f"s_sub_u32 s{sT+11}, s{sR}, {wk0}")
        self.read_frags(216)
        self.mksrd(srdOUT, 20, 10240)
        a("v_lshrrev_b32 v6, 3, v0")
        a("v_mul_u32_u24 v15, 20480, v6")
        a("v_add_u32 v15, v15, v1")
        a(f"s_cmp_ge_u32 s{sT+10}, 5")
        a("s_cbranch_scc1 L_nored1")
        a(f"s_mul_i32 s{sT}, s{sR}, 5")
        a(f"s_add_u32 s{sT}, s{sT}, s{sT+10}")
        a(f"s_lshr_b32 s{sT+1}, s{sT}, 4")
        a(f"s_and_b32 s{sT+2}, s{sT}, 15")
        a(f"s_bfe_u32 s{sT+3}, s{sT+2}, 0x10001")
        a(f"s_lshr_b32 s{sT+4}, s{sT+2}, 2")
        a(f"s_and_b32 s{sT+5}, s{sT+2}, 1")
        a(f"s_lshl1_add_u32 s{sT+4}, s{sT+4}, s{sT+5}")
        a(f"s_lshl_b32 s{sT+12}, s{sT}, 7")
        a(f"s_add_u32 s{sT+12}, s{sT+12}, {YBUF}")
        a(f"s_add_u32 s{sT+13}, s{sT+12}, {8*20480}")
        a(f"s_add_u32 s{sT+14}, s{sT+12}, {16*20480}")
        a("v_lshrrev_b32 v8, 4, v0")
        a(f"s_lshl_b32 s{sT+5}, s{sT+3}, 2")
        a(f"v_add_u32 v8, s{sT+5}, v8")
        a("v_mul_u32_u24 v12, 1280, v8")
        a(f"s_lshl_b32 s{sT+5}, s{sT+1}, 7")
        a(f"s_lshl1_add_u32 s{sT+5}, s{sT+4}, s{sT+5}")
        a(f"v_add3_u32 v12, v12, v1, s{sT+5}")
        a(f"buffer_load_ushort v13, v12, {srd(srdX)}, 0 offen")
        a("v_mul_u32_u24 v9, 2560, v8")
        a("v_lshrrev_b32 v10, 2, v1")
        a(f"s_lshl_b32 s{sT+5}, s{sT+1}, 8")
        a(f"s_lshl_b32 s{sT+6}, s{sT+4}, 5")
        a(f"s_add_u32 s{sT+5}, s{sT+5}, s{sT+6}")
        a(f"v_add3_u32 v9, v9, v10, s{sT+5}")
        a(f"s_mov_b32 s{sT+15}, {HBUF}")
        self.poll("L_py", [f"buffer_load_dwordx4 {vr(64+4*i)}, v15, {srd(srdWS)}, s{sT+12+i} offen sc1" for i in range(3)],
                  range(64, 76), 4)
        self.stamp(10)
        self.reduce24(64)
        a("v_cvt_pk_bf16_f32 v64, v64, v64")
        a("v_lshlrev_b32 v13, 16, v13")
        a("v_and_b32 v64, 0xffff0000, v64")
        a("v_add_f32 v14, v13, v64")
        a("v_cvt_pk_bf16_f32 v14, v14, v14")
        a("v_and_b32 v14, 0xffff0000, v14")
        a("s_mov_b32 exec_lo, 0x00ff00ff")
        a("s_mov_b32 exec_hi, 0x00ff00ff")
        self.pub("L_pubh", [f"buffer_store_dword v14, v9, {srd(srdWS)}, s{sT+15} offen"])
        a("s_mov_b64 exec, -1")
        a(f"s_lshr_b32 s{sT+5}, s{sT+1}, 1")
        a(f"s_lshl_b32 s{sT+5}, s{sT+5}, 2")
        a(f"s_and_b32 s{sT+6}, s{sT+1}, 1")
        a(f"s_add_u32 s{sT+5}, s{sT+5}, s{sT+6}")
        a(f"s_lshl1_add_u32 s{sT+5}, s{sT+3}, s{sT+5}")
        a(f"s_lshl1_add_u32 s{sT+6}, s{sT+6}, s{sT+3}")
        a(f"s_add_u32 s{sT+6}, s{sT+6}, 16")
        a(f"s_cmp_lt_u32 s{sT+1}, 8")
        a(f"s_cselect_b32 s{sT+5}, s{sT+5}, s{sT+6}")
        a(f"s_lshl_b32 s{sT+5}, s{sT+5}, 7")
        a(f"s_mul_i32 s{sT+6}, s{sT+4}, 2560")
        a(f"s_add_u32 s{sT+12}, s{sT+5}, s{sT+6}")
        a(f"s_add_u32 s{sT+12}, s{sT+12}, {FBUF}")
        a(f"s_add_u32 s{sT+13}, s{sT+12}, {8*20480}")
        a(f"s_add_u32 s{sT+14}, s{sT+12}, {16*20480}")
        a("L_nored1:")
        a(f"s_cmp_ge_u32 s{sT+11}, 24")
        a("s_cbranch_scc1 L_noffn")
        a(f"s_mul_i32 s{sT}, s{sW}, 2560")
        a(f"s_add_u32 s{sT}, s{sT}, {HBUF}")
        a("v_lshlrev_b32 v8, 3, v0")
        a(f"s_mul_i32 s{sT+1}, s{sW}, {XRS}")
        a(f"v_add_u32 v10, s{sT+1}, v8")
        a("v_lshlrev_b32 v11, 2, v0")
        a(f"v_add_u32 v11, s{sT+1}, v11")
        a("v_and_b32 v5, 7, v0")
        a(f"v_mul_u32_u24 v7, {SRS}, v5")
        a("v_lshl_add_u32 v7, v2, 4, v7")
        a(f"v_mul_u32_u24 v5, {XRS}, v5")
        a("v_lshl_add_u32 v5, v2, 4, v5")
        a("v_bfe_u32 v16, v0, 4, 1")
        a("v_lshrrev_b32 v17, 5, v0")
        a("v_lshlrev_b32 v16, 2, v16")
        a("v_lshl_add_u32 v16, v17, 1, v16")
        a("v_bfe_u32 v17, v0, 3, 1")
        a("v_add_u32 v16, v16, v17")
        a(f"v_mul_u32_u24 v16, {SRS}, v16")
        a("v_lshrrev_b32 v17, 3, v1")
        a(f"s_lshl_b32 s{sT+1}, s{sW}, 4")
        a(f"v_add3_u32 v16, v16, v17, s{sT+1}")
        a(f"s_mul_i32 s{sT+2}, s{sT+11}, 20480")
        a(f"s_mul_i32 s{sT+3}, s{sW}, 2560")
        a(f"s_add_u32 s{sT+2}, s{sT+2}, s{sT+3}")
        a(f"s_add_u32 s{sT+2}, s{sT+2}, {FBUF}")
        a("v_lshrrev_b32 v17, 4, v0")
        a("v_lshl_add_u32 v17, v17, 7, v1")
        pl = o["pollld"]
        self.poll("L_ph", [f"buffer_load_dwordx4 v[40:43], v3, {srd(srdWS)}, s{sT} offen {pl}",
                           f"buffer_load_dwordx4 v[44:47], v3, {srd(srdWS)}, s{sT} offen offset:1024 {pl}",
                           f"buffer_load_dwordx2 v[48:49], v8, {srd(srdWS)}, s{sT} offen offset:2048 {pl}"],
                  range(40, 50), 4)
        self.stamp(11)
        self.layernorm()
        a(f"ds_write_b64 v10, v[32:33] offset:{L_XN}")
        a(f"ds_write_b64 v10, v[34:35] offset:{L_XN+512}")
        a(f"ds_write_b32 v11, v36 offset:{L_XN+1024}")
        a("s_waitcnt lgkmcnt(0)")
        a("s_barrier")
        for kb in range(10): a(f"ds_read_b128 {vr(76+4*kb)}, v5 offset:{L_XN+128*kb}")
        for kb in range(10):
            a(f"s_waitcnt lgkmcnt({9-kb})")
            c = "0" if kb == 0 else "v[116:119]"
            a(f"v_mfma_f32_16x16x32_bf16 v[116:119], {vr(76+4*kb)}, {vr(176+4*kb)}, {c}")
        a("v_permlane32_swap_b32 v116, v118")
        a("v_permlane32_swap_b32 v117, v119")
        a("v_add_f32_dpp v120, v118, v116 row_ror:8 row_mask:0xf bank_mask:0x3")
        a("v_add_f32_dpp v120, v117, v119 row_ror:8 row_mask:0xf bank_mask:0xc")
        a("v_cvt_pk_bf16_f32 v120, v120, v120")
        a("v_and_b32 v120, 0xffff0000, v120")
        a(f"v_mul_f32 v121, {hx(f2u(-1.4426950408889634))}, v120")
        a("v_exp_f32 v121, v121")
        a("v_add_f32 v121, 1.0, v121")
        a("v_rcp_f32 v121, v121")
        a("v_mul_f32 v120, v120, v121")
        a("v_cvt_pk_bf16_f32 v120, v120, v120")
        a(f"ds_write_b16 v16, v120 offset:{L_SA}")
        a("s_waitcnt lgkmcnt(0)")
        a("s_barrier")
        a(f"ds_read_b128 v[120:123], v7 offset:{L_SA}")
        a("s_waitcnt lgkmcnt(0)")
        for cb in range(10):
            a(f"v_mfma_f32_16x16x32_bf16 {vr(124+4*cb)}, v[120:123], {vr(216+4*cb)}, 0")
        for q in range(2):
            self.combine4([124 + 4 * (4 * q + k) for k in range(4)], 164 + 4 * q)
        for rr in range(4): a(f"v_permlane32_swap_b32 v{156+rr}, v{160+rr}")
        for rr in range(4): a(f"v_add_f32_dpp v{172+rr}, v{160+rr}, v{156+rr} row_ror:8 row_mask:0xf bank_mask:0xf")
        self.pub("L_pubf", [f"buffer_store_dwordx4 v[164:167], v3, {srd(srdWS)}, s{sT+2} offen",
                            f"buffer_store_dwordx4 v[168:171], v3, {srd(srdWS)}, s{sT+2} offen offset:1024"])
        a("s_mov_b32 exec_lo, 0x00ff00ff")
        a("s_mov_b32 exec_hi, 0x00ff00ff")
        self.pub("L_pubg", [f"buffer_store_dwordx4 v[172:175], v17, {srd(srdWS)}, s{sT+2} offen offset:2048"])
        a("s_mov_b64 exec, -1")
        self.stamp(12)
        a("L_noffn:")
        a(f"s_cmp_ge_u32 s{sT+10}, 5")
        a("s_cbranch_scc1 L_done")
        self.poll("L_pf", [f"buffer_load_dwordx4 {vr(64+4*i)}, v15, {srd(srdWS)}, s{sT+12+i} offen {pl}" for i in range(3)],
                  range(64, 76), 4)
        self.stamp(13)
        self.reduce24(64)
        a("v_cvt_pk_bf16_f32 v64, v64, v64")
        a("v_and_b32 v64, 0xffff0000, v64")
        a("v_add_f32 v14, v14, v64")
        a("v_cvt_pk_bf16_f32 v14, v14, v14")
        a("s_mov_b32 exec_lo, 0x00ff00ff")
        a("s_mov_b32 exec_hi, 0x00ff00ff")
        a(f"buffer_store_short v14, v12, {srd(srdOUT)}, 0 offen")
        a("s_mov_b64 exec, -1")
        a("L_done:")
        if o["stamps"]:
            a("s_waitcnt vmcnt(0)")
            self.stamp(14)
            a(f"s_lshl_b32 s{sT}, s2, 3")
            a(f"s_add_u32 s{sT}, s{sT}, s{sW}")
            a(f"s_lshl_b32 s{sT}, s{sT}, 6")
            a(f"s_add_u32 s{sT}, s{sT}, {STAMP}")
            for k in range(16): a(f"v_mov_b32 v{16+k}, s{sST+k}")
            a("v_mov_b32 v4, 0")
            a("s_mov_b64 exec, 1")
            for k in range(4): a(f"buffer_store_dwordx4 {vr(16+4*k)}, v4, {srd(srdWS)}, s{sT} offen offset:{16*k}")
        a("L_end:")
        a("s_endpgm")
        body, nn = fix_hazards(self.L)
        head = open("cdna_kernels/" + NAME + ".s.ref").read().split("; Override launch")[0] if False else ""
        out = [f"; @launch grid=(256,1,1) block=(512,1,1) lds={LDS_BYTES}",
               '.amdgcn_target "amdgcn-amd-amdhsa--gfx950"', ".text", f".globl {NAME}_kernel", ".p2align 8",
               f".type {NAME}_kernel,@function"]
        out += [s if s.endswith(":") else "    " + s for s in body]
        out += ['.section .rodata,"a"', ".p2align 6", f".amdhsa_kernel {NAME}_kernel",
                "  .amdhsa_next_free_vgpr 256", "  .amdhsa_next_free_sgpr 102", "  .amdhsa_accum_offset 256",
                "  .amdhsa_group_segment_fixed_size 0", "  .amdhsa_kernarg_size 88", "  .amdhsa_user_sgpr_count 2",
                "  .amdhsa_user_sgpr_kernarg_segment_ptr 1", "  .amdhsa_system_sgpr_workgroup_id_x 1",
                "  .amdhsa_float_denorm_mode_32 3", ".end_amdhsa_kernel"]
        return "\n".join(out) + "\n"

def gen(**o): return G(**o).gen()

if __name__ == "__main__":
    kw = {}
    for s in sys.argv[2:]:
        k, v = s.split("=")
        try: v = eval(v)
        except Exception: pass
        kw[k] = v
    open(sys.argv[1], "w").write(gen(**kw))
```

```python
import struct, sys
from asmlib import fix_hazards

NAME = "sequential_preLN__sliding_block_cached__dense_activation_silu__decode"
f2u = lambda x: struct.unpack("<I", struct.pack("<f", x))[0]
hx = lambda x: "0x%08x" % (x & 0xffffffff)

OBUF = 0
YBUF = OBUF + 96 * 1024
HBUF = YBUF + 24 * 20480
FBUF = HBUF + 8 * 2560
CLR_END = FBUF + 24 * 20480
CLR_PER_WG = 4352
QBUF = 256 * CLR_PER_WG
TBUF = QBUF + 8 * 24 * 2048
WS_USED = TBUF + 1024
STAMP = 2 << 20
XRS = 1296
L_XN = 0
L_Q = L_XN + 8 * XRS
L_SM = L_Q + 384
L_OP = L_SM + 64
SRS = 144
L_SA = L_OP + 4 * 3072
L_W = L_SA + 8 * SRS
LDS_BYTES = L_W + 81920

sX, sR, sH, sB, sW = 26, 27, 28, 29, 30
srdK, srdV, srdX, srdWt, srdWS, srdDBG, srdOUT = 32, 36, 40, 44, 48, 52, 56
sPlo, sPhi, sLOC, sRot, sOff, sCnt = 80, 81, 82, 83, 84, 85
sT = 60
sST = 86
SPIN = 100000

def srd(n): return f"s[{n}:{n+3}]"
def vr(a, n=4): return f"v[{a}:{a+n-1}]" if n > 1 else f"v{a}"

class G:
    def __init__(self, **o):
        self.o = dict(W=5, rot=11, burst3=6, burst4=3, ring=48, stamps=False, local=True, pollld="sc1",
                      hw=4, ow=4, wk0=8, W2=None, w2from=168, kvpol="nt", wpol="nt", w1split=3, skip1=False, skip2=False, fine=False, ipre=False, noq=False, notail=False, noclr=False, nowq=False, nowo=False, nocomp=False, Wk=6, wkall=True, wopre=1, b5b=True, plainfirst=True)
        self.o.update(o)
        self.L = []
        self.nst = 0

    def a(self, s): self.L.append(s)

    def stamp(self, k):
        if self.o["stamps"]:
            self.a(f"s_memrealtime s[{sT+18}:{sT+19}]")
            self.a("s_waitcnt lgkmcnt(0)")
            self.a(f"s_mov_b32 s{sST+k}, s{sT+18}")

    def mksrd(self, d, base, nbytes, off=None):
        a = self.a
        if off is None:
            a(f"s_mov_b32 s{d}, s{base}"); a(f"s_mov_b32 s{d+1}, s{base+1}")
        else:
            a(f"s_add_u32 s{d}, s{base}, {off}"); a(f"s_addc_u32 s{d+1}, s{base+1}, 0")
        a(f"s_mov_b32 s{d+2}, {nbytes}"); a(f"s_mov_b32 s{d+3}, 0x20000")

    def swapbits(self, d, x, t):
        a = self.a
        a(f"s_and_b32 s{d}, s{x}, 1")
        a(f"s_and_b32 s{t}, s{x}, 2")
        a(f"s_lshl1_add_u32 s{d}, s{t}, s{d}")
        a(f"s_lshr_b32 s{t}, s{x}, 1")
        a(f"s_and_b32 s{t}, s{t}, 2")
        a(f"s_add_u32 s{d}, s{d}, s{t}")

    def red_low3(self, op, v):
        a = self.a
        a(f"{op}_dpp v{v}, v{v}, v{v} quad_perm:[1,0,3,2] row_mask:0xf bank_mask:0xf")
        a(f"{op}_dpp v{v}, v{v}, v{v} quad_perm:[2,3,0,1] row_mask:0xf bank_mask:0xf")
        a(f"{op}_dpp v{v}, v{v}, v{v} row_half_mirror row_mask:0xf bank_mask:0xf")

    def red_high3(self, op, v, t):
        a = self.a
        a(f"{op}_dpp v{v}, v{v}, v{v} row_ror:8 row_mask:0xf bank_mask:0xf")
        a(f"v_mov_b32 v{t}, v{v}")
        a(f"v_permlane16_swap_b32 v{v}, v{t}")
        a(f"{op} v{v}, v{v}, v{t}")
        a(f"v_mov_b32 v{t}, v{v}")
        a(f"v_permlane32_swap_b32 v{v}, v{t}")
        a(f"{op} v{v}, v{v}, v{t}")

    def layernorm(self):
        a = self.a
        z = list(range(40, 50)); d = list(range(50, 60))
        a("v_add_f32 v60, v40, v41"); a("v_add_f32 v61, v42, v43"); a("v_add_f32 v62, v44, v45"); a("v_add_f32 v63, v46, v47")
        a("v_add_f32 v60, v60, v61"); a("v_add_f32 v62, v62, v63"); a("v_add_f32 v61, v48, v49")
        a("v_add_f32 v60, v60, v62"); a("v_add_f32 v60, v60, v61")
        self.red_low3("v_add_f32", 60); self.red_high3("v_add_f32", 60, 61)
        a(f"v_mul_f32 v60, {hx(f2u(1.0/640))}, v60")
        for i in range(10): a(f"v_sub_f32 v{d[i]}, v{z[i]}, v60")
        a("v_mul_f32 v61, v50, v50"); a("v_mul_f32 v62, v51, v51")
        for i in range(2, 10, 2):
            a(f"v_fmac_f32 v61, v{d[i]}, v{d[i]}"); a(f"v_fmac_f32 v62, v{d[i+1]}, v{d[i+1]}")
        a("v_cvt_pk_bf16_f32 v60, v60, v60")
        a("v_add_f32 v61, v61, v62")
        a("v_and_b32 v60, 0xffff0000, v60")
        fill = []
        for i in range(10): fill.append(f"v_sub_f32 v{d[i]}, v{z[i]}, v60")
        for i in range(5): fill.append(f"v_cvt_pk_bf16_f32 v{32+i}, v{d[2*i]}, v{d[2*i+1]}")
        for i in range(5):
            fill.append(f"v_lshlrev_b32 v{d[2*i]}, 16, v{32+i}"); fill.append(f"v_and_b32 v{d[2*i+1]}, 0xffff0000, v{32+i}")
        chain = ["v_add_f32_dpp v61, v61, v61 quad_perm:[1,0,3,2] row_mask:0xf bank_mask:0xf",
                 "v_add_f32_dpp v61, v61, v61 quad_perm:[2,3,0,1] row_mask:0xf bank_mask:0xf",
                 "v_add_f32_dpp v61, v61, v61 row_half_mirror row_mask:0xf bank_mask:0xf",
                 "v_add_f32_dpp v61, v61, v61 row_ror:8 row_mask:0xf bank_mask:0xf\nv_mov_b32 v62, v61",
                 "v_permlane16_swap_b32 v61, v62\nv_add_f32 v61, v61, v62\nv_mov_b32 v62, v61",
                 "v_permlane32_swap_b32 v61, v62\nv_add_f32 v61, v61, v62\n" + f"v_mul_f32 v61, {hx(f2u(1.0/640))}, v61\n"
                 "v_cvt_pk_bf16_f32 v61, v61, v61\nv_and_b32 v61, 0xffff0000, v61\n"
                 f"v_add_f32 v61, {hx(f2u(1e-5))}, v61\nv_cvt_pk_bf16_f32 v61, v61, v61\nv_and_b32 v61, 0xffff0000, v61\nv_sqrt_f32 v61, v61",
                 "v_cvt_pk_bf16_f32 v61, v61, v61\nv_and_b32 v61, 0xffff0000, v61\nv_rcp_f32 v61, v61"]
        for c in chain:
            for _ in range(2):
                if fill: a(fill.pop(0))
            for s in c.split("\n"): a(s)
        for s in fill: a(s)
        for i in range(10): a(f"v_mul_f32 v{d[i]}, v{d[i]}, v61")
        for i in range(5): a(f"v_cvt_pk_bf16_f32 v{32+i}, v{d[2*i]}, v{d[2*i+1]}")

    def transpose(self, raw, dst):
        for m in range(8):
            for d in range(4):
                self.a(f"v_perm_b32 v{dst+4*m+d}, v{raw+4*(2*d+1)+(m>>1)}, v{raw+4*(2*d)+(m>>1)}, s{sPhi if m & 1 else sPlo}")

    def combineB(self, accs, dsts):
        a = self.a
        for A in accs:
            a(f"v_permlane32_swap_b32 v{A}, v{A+2}")
            a(f"v_permlane32_swap_b32 v{A+1}, v{A+3}")
        for A, D in zip(accs, dsts):
            a(f"v_add_f32_dpp v{D}, v{A+2}, v{A} row_ror:8 row_mask:0xf bank_mask:0x3")
        for A, D in zip(accs, dsts):
            a(f"v_add_f32_dpp v{D}, v{A+1}, v{A+3} row_ror:8 row_mask:0xf bank_mask:0xc")

    def poll(self, name, loads, regs, tmp, first=None, cmp=None):
        a = self.a
        a(f"s_mov_b32 s{sCnt}, {SPIN}")
        if first:
            for s in first: a(s)
            a(f"s_branch {name}_c")
        a(f"{name}:")
        for s in loads: a(s)
        if first: a(f"{name}_c:")
        a(f"s_sub_u32 s{sCnt}, s{sCnt}, 1")
        a(f"s_cbranch_scc1 {name}_x")
        a("s_waitcnt vmcnt(0)")
        if cmp:
            a(cmp)
        else:
            regs = list(regs)
            a(f"v_max3_u32 v{tmp}, v{regs[0]}, v{regs[1]}, v{regs[2]}")
            regs = regs[3:]
            while len(regs) >= 2:
                a(f"v_max3_u32 v{tmp}, v{tmp}, v{regs[0]}, v{regs[1]}"); regs = regs[2:]
            if regs: a(f"v_max_u32 v{tmp}, v{tmp}, v{regs[0]}")
            a(f"v_cmp_eq_u32 vcc, -1, v{tmp}")
        a(f"s_cbranch_vccnz {name}")
        a(f"{name}_x:")
        a("s_waitcnt vmcnt(0)")

    def pub(self, name, stores):
        a = self.a
        if not self.o["local"]:
            for s in stores: a(s + " sc1")
            return
        a(f"s_cmp_eq_u32 s{sLOC}, 1")
        a(f"s_cbranch_scc1 {name}_l")
        for s in stores: a(s + " sc1")
        a(f"s_branch {name}_e")
        a(f"{name}_l:")
        for s in stores: a(s)
        a(f"{name}_e:")

    def reduce24(self, z):
        a = self.a
        for rr in range(4): a(f"v_add_f32 v{z+rr}, v{z+rr}, v{z+4+rr}")
        for rr in range(4): a(f"v_add_f32 v{z+rr}, v{z+rr}, v{z+8+rr}")
        a(f"v_permlane32_swap_b32 v{z}, v{z+2}")
        a(f"v_permlane32_swap_b32 v{z+1}, v{z+3}")
        a(f"v_add_f32 v{z}, v{z}, v{z+2}")
        a(f"v_add_f32 v{z+1}, v{z+1}, v{z+3}")
        a(f"v_permlane16_swap_b32 v{z}, v{z+1}")
        a(f"v_add_f32 v{z}, v{z}, v{z+1}")
        a(f"v_add_f32_dpp v{z}, v{z}, v{z} row_ror:8 row_mask:0xf bank_mask:0xf")

    def read_frags(self, dst):
        a = self.a
        a(f"s_lshl_b32 s{sT}, s{sW}, 10")
        a(f"s_add_u32 s{sT}, s{sT}, {L_W}")
        a(f"v_add_u32 v4, s{sT}, v3")
        a("v_add_u32 v5, 0x10000, v4")
        for k in range(10):
            if k < 8: a(f"ds_read_b128 {vr(dst+4*k)}, v4 offset:{8192*k}")
            else: a(f"ds_read_b128 {vr(dst+4*k)}, v5 offset:{8192*(k-8)}")

    def stream_setup(self):
        self.issued = 0; self.done = 0
        self.free = list(range(self.o["ring"])); self.slot = {}
        self.maxslot = self.o["ring"]

    def wait_out(self, n):
        if self.issued - self.done > n:
            self.a(f"s_waitcnt vmcnt({n})"); self.done = self.issued - n

    def issue(self, throttle=True):
        i = self.issued
        if i >= 192: return
        W = self.o["W"]
        if self.o["W2"] and i >= self.o["w2from"]: W = self.o["W2"]
        if throttle:
            Wk = self.o["Wk"]
            if Wk and Wk > W and self.issued - self.done > W - 1:
                self.nlab = getattr(self, "nlab", 0) + 1
                self.wait_out(Wk - 1)
                self.a(f"s_cbranch_vccnz L_wk{self.nlab}")
                self.a(f"s_waitcnt vmcnt({W-1})")
                self.a(f"L_wk{self.nlab}:")
            else:
                self.wait_out(W - 1)
        self.free.sort()
        s = self.free.pop(0); assert s < self.maxslot, (i, s)
        self.slot[i] = s
        t = i % 3
        if t == 0 and i > 0:
            self.a(f"s_add_u32 s{sOff}, s{sOff}, 3072")
            self.a(f"s_cmp_eq_u32 s{sOff}, 98304")
            self.a(f"s_cselect_b32 s{sOff}, 0, s{sOff}")
        r = 64 + 4 * s
        self.a(f"buffer_load_dwordx4 {vr(r)}, v12, {srd(srdK if i < 96 else srdV)}, s{sOff} offen offset:{128*t} {self.o['kvpol']}")
        self.issued += 1

    def consumeK(self, g):
        a = self.a
        self.wait_out(self.issued - 3 * (g + 1))
        base = [64 + 4 * self.slot[3 * g + t] for t in range(3)]
        acc = [32 + g, 13, 14]
        if self.o["nocomp"]:
            for t in range(3): self.free.append(self.slot.pop(3 * g + t))
            return
        for d in range(4):
            for t in range(3):
                c = "0" if d == 0 else f"v{acc[t]}"
                a(f"v_dot2_f32_bf16 v{acc[t]}, v{base[t]+d}, v{16+4*t+d}, {c}")
        for t in range(3): self.free.append(self.slot.pop(3 * g + t))
        a("v_add_f32 v13, v13, v14")
        a(f"v_add_f32 v{32+g}, v{32+g}, v13")
        self.red_low3("v_add_f32", 32 + g)
        if g & 1:
            p, q = 32 + g - 1, 32 + g
            a(f"v_cvt_pk_bf16_f32 v13, v{p}, v{q}")
            a(f"v_lshlrev_b32 v{p}, 16, v13"); a(f"v_and_b32 v{q}, 0xffff0000, v13")
            sc = hx(f2u(192 ** -0.5))
            a(f"v_mul_f32 v{p}, {sc}, v{p}"); a(f"v_mul_f32 v{q}, {sc}, v{q}")
            a(f"v_cvt_pk_bf16_f32 v13, v{p}, v{q}")
            a(f"v_lshlrev_b32 v{p}, 16, v13"); a(f"v_and_b32 v{q}, 0xffff0000, v13")
            if g == 1: a(f"v_max_f32 v15, v{p}, v{q}")
            else: a(f"v_max3_f32 v15, v15, v{p}, v{q}")

    def consumeV(self, g, fine=False):
        a = self.a
        A = 4 if g & 1 else 8
        for d in range(4): a(f"v_and_b32 v{A+d}, v{32+g}, v{28+d}")
        i0 = 96 + 3 * g
        if not fine: self.wait_out(self.issued - (i0 + 3))
        for t in range(3):
            if fine: self.wait_out(self.issued - (i0 + t + 1))
            s = self.slot.pop(i0 + t); self.free.append(s)
            c = "0" if g == 0 else vr(16 + 4 * t)
            a(f"v_mfma_f32_16x16x32_bf16 {vr(16+4*t)}, {vr(A)}, {vr(64+4*s)}, {c}")

    def gen(self):
        a = self.a; o = self.o
        W = o["W"]
        a(f"{NAME}_kernel:")
        a("s_cmp_ge_u32 s2, 256")
        a("s_cbranch_scc1 L_end")
        a("s_load_dwordx16 s[4:19], s[0:1], 0")
        a("s_load_dwordx4 s[20:23], s[0:1], 64")
        a("s_load_dwordx2 s[24:25], s[0:1], 80")
        if o["stamps"]:
            a(f"s_memrealtime s[{sST}:{sST+1}]")
        a("v_lshrrev_b32 v4, 6, v0")
        a("v_and_b32 v0, 63, v0")
        a(f"s_and_b32 s{sX}, s2, 7")
        a(f"v_readfirstlane_b32 s{sW}, v4")
        a(f"s_lshr_b32 s{sR}, s2, 3")
        a(f"s_and_b32 s{sT}, s{sR}, 3")
        a(f"s_lshl2_add_u32 s{sH}, s{sX}, s{sT}")
        a(f"s_lshr_b32 s{sB}, s{sR}, 2")
        a("v_and_b32 v1, 7, v0")
        a("v_lshlrev_b32 v1, 4, v1")
        a("v_lshlrev_b32 v3, 4, v0")
        a("v_lshrrev_b32 v6, 3, v0")
        a(f"s_mul_i32 s{sT+1}, s{sW}, 1280")
        a("v_lshlrev_b32 v5, 2, v0")
        a(f"s_lshl_b32 s{sT}, s{sB}, 5")
        a(f"s_add_u32 s{sT}, s{sT}, s{sH}")
        a(f"s_mul_i32 s{sT}, s{sT}, 1572864")
        a(f"s_add_u32 s{sT}, s{sT}, {3072*384}")
        a(f"s_mul_i32 s{sOff}, s2, {o['rot']}")
        a(f"s_and_b32 s{sOff}, s{sOff}, 31")
        a(f"s_mul_i32 s{sOff}, s{sOff}, 3072")
        a(f"s_mul_i32 s{sT+2}, s{sW}, 98304")
        a("v_mul_u32_u24 v12, 384, v6")
        a(f"v_add3_u32 v12, v12, v1, s{sT+2}")
        a("s_waitcnt lgkmcnt(0)")
        if o["stamps"]:
            for k in range(1, 16): a(f"s_mov_b32 s{sST+k}, 0")
        self.mksrd(srdX, 4, 10240)
        self.mksrd(srdK, 6, 393216, f"s{sT}")
        a(f"buffer_load_dwordx4 v[32:35], v3, {srd(srdX)}, s{sT+1} offen")
        a(f"buffer_load_dword v36, v5, {srd(srdX)}, s{sT+1} offen offset:1024")
        a(f"s_cmp_ge_u32 s{sW}, 4")
        a("s_cbranch_scc1 L_hpro")
        self.stream_setup()
        for _ in range(W): self.issue(throttle=False)
        a("L_hpro:")
        self.mksrd(srdV, 8, 393216, f"s{sT}")
        self.mksrd(srdWS, 24, WS_USED if not o["stamps"] else 4 << 20)
        self.mksrd(srdWt, 10, 0 if o["nowq"] else 7864320)
        self.mksrd(srdDBG, 22, 256)
        a("v_lshrrev_b32 v2, 4, v0")
        a("v_and_b32 v7, 1, v6")
        a("v_lshl_add_u32 v2, v7, 2, v2")
        a(f"s_mov_b32 s{sPlo}, 0x05040100")
        a(f"s_mov_b32 s{sPhi}, 0x07060302")
        a(f"s_cmp_ge_u32 s{sW}, 4")
        a("s_cbranch_scc1 L_hpro2")
        a(f"s_waitcnt vmcnt({W})")
        a("s_branch L_ln1")
        a("L_hpro2:")
        a(f"s_cmp_eq_u32 s{sW}, 6")
        a("s_cbranch_scc1 L_clear")
        a(f"s_cmp_eq_u32 s{sW}, 7")
        a("s_cbranch_scc1 " + ("L_ipre" if o["ipre"] else "L_w0"))
        a(f"s_cmp_ge_u32 s{sR}, 24")
        a(f"s_cselect_b32 s{sT+3}, 5, 4")
        a(f"s_cmp_lg_u32 s{sW}, s{sT+3}")
        a("s_cbranch_scc1 L_w0")
        a(f"s_cmp_eq_u32 s{sW}, 5")
        a("s_cbranch_scc1 L_qclear")
        a(f"s_cmp_ge_u32 s{sR}, 12")
        a(f"s_cselect_b32 s{sT+3}, 1, 0")
        a(f"s_mul_i32 s{sT+4}, s{sT+3}, 12")
        a(f"s_sub_u32 s{sT+4}, s{sR}, s{sT+4}")
        a(f"s_mul_i32 s{sT+5}, s{sT+3}, {320*12288}")
        a(f"s_mul_i32 s{sT+6}, s{sX}, 1536")
        a(f"s_add_u32 s{sT+5}, s{sT+5}, s{sT+6}")
        a(f"s_lshl_b32 s{sT+6}, s{sT+4}, 7")
        a(f"s_add_u32 s{sT+5}, s{sT+5}, s{sT+6}")
        a(f"v_mul_u32_u24 v7, {8*12288}, v2")
        a("v_add_u32 v7, v7, v1")
        a(f"s_movk_i32 s{sT+6}, 12288")
        a(f"s_mov_b32 s{sT+7}, {57*12288}")
        for kb in range(5):
            for e in range(8):
                a(f"buffer_load_dwordx4 {vr(64+32*kb+4*e)}, v7, {srd(srdWt)}, s{sT+5} offen {o['wpol']}")
                if kb * 8 + e < 39: a(f"s_add_u32 s{sT+5}, s{sT+5}, s{sT+6 if e < 7 else sT+7}")
        a("s_waitcnt vmcnt(40)")
        a("s_branch L_ln1")
        a("L_qclear:")
        if o["noclr"]: a("s_branch L_w0")
        for k in range(4): a(f"v_mov_b32 v{8+k}, -1")
        a(f"s_lshl_b32 s{sT+3}, s{sX}, 3")
        a(f"s_add_u32 s{sT+3}, s{sT+3}, s{sR}")
        a(f"s_sub_u32 s{sT+3}, s{sT+3}, 24")
        a(f"s_mul_i32 s{sT+4}, s{sT+3}, 6144")
        a(f"s_add_u32 s{sT+4}, s{sT+4}, {QBUF}")
        for k in range(6):
            if k == 4: a(f"s_add_u32 s{sT+4}, s{sT+4}, 4096")
            a(f"buffer_store_dwordx4 v[8:11], v3, {srd(srdWS)}, s{sT+4} offen offset:{1024*(k%4)} sc1")
        a(f"s_lshl_b32 s{sT+4}, s{sT+3}, 4")
        a(f"s_add_u32 s{sT+4}, s{sT+4}, {TBUF}")
        a("s_mov_b64 exec, 1")
        a(f"buffer_store_dwordx4 v[8:11], v3, {srd(srdWS)}, s{sT+4} offen sc1")
        a(f"s_lshl_b32 s{sT+4}, s{sX}, 5")
        a("v_mov_b32 v7, 1")
        a("s_waitcnt vmcnt(0)")
        a(f"buffer_atomic_add v7, v3, {srd(srdDBG)}, s{sT+4} offen sc1")
        a("s_mov_b64 exec, -1")
        a("s_branch L_ln1")
        if o["ipre"]:
            a("L_ipre:")
            a(f"s_getpc_b64 s[{sT+4}:{sT+5}]")
            a("L_ipc:")
            a(f"s_sub_u32 s{sT+4}, s{sT+4}, L_ipc-{NAME}_kernel")
            a(f"s_subb_u32 s{sT+5}, s{sT+5}, 0")
            a(f"s_mov_b32 s{sT+6}, L_end-{NAME}_kernel")
            a(f"s_mov_b32 s{sT+7}, 0x20000")
            a(f"s_lshl_b32 s{sT+3}, s{sR}, 10")
            a(f"buffer_load_dwordx4 v[8:11], v3, s[{sT+4}:{sT+7}], s{sT+3} offen")
            a("s_branch L_w0")
        a("L_clear:")
        if o["noclr"]: a("s_branch L_w0")
        for k in range(4): a(f"v_mov_b32 v{8+k}, -1")
        a(f"s_mul_i32 s{sT+3}, s2, {CLR_PER_WG}")
        for k in range(4): a(f"buffer_store_dwordx4 v[8:11], v3, {srd(srdWS)}, s{sT+3} offen offset:{1024*k} sc1")
        a(f"s_add_u32 s{sT+3}, s{sT+3}, 4096")
        a("s_mov_b64 exec, 0xffff")
        a(f"buffer_store_dwordx4 v[8:11], v3, {srd(srdWS)}, s{sT+3} offen sc1")
        a("s_mov_b64 exec, -1")
        a("L_w0:")
        a("s_waitcnt vmcnt(0)")
        a("L_ln1:")
        for i in range(5):
            a(f"v_lshlrev_b32 v{40+2*i}, 16, v{32+i}"); a(f"v_and_b32 v{41+2*i}, 0xffff0000, v{32+i}")
        self.layernorm()
        a(f"s_mul_i32 s{sT+8}, s{sW}, {XRS}")
        a(f"v_add_u32 v8, s{sT+8}, v3")
        a(f"v_add_u32 v9, s{sT+8}, v5")
        a(f"ds_write_b128 v8, v[32:35] offset:{L_XN}")
        a(f"ds_write_b32 v9, v36 offset:{L_XN+1024}")
        a("s_waitcnt lgkmcnt(0)")
        a("s_barrier")
        self.stamp(1)
        a(f"s_cmp_ge_u32 s{sW}, 4")
        a("s_cbranch_scc1 L_helper")

        a("v_and_b32 v4, 1, v0")
        a("v_lshlrev_b32 v4, 4, v4")
        a("v_mov_b32 v7, 0xffff")
        a("v_lshlrev_b32 v4, v4, v7")
        a("v_bfe_u32 v7, v0, 1, 2")
        for d in range(4):
            a(f"v_cmp_eq_u32 vcc, {d}, v7")
            a(f"v_cndmask_b32 v{28+d}, 0, v4, vcc")
        if o["Wk"]:
            if o["wkall"]:
                a(f"s_mov_b32 s{sT+4}, 1")
            else:
                a(f"s_sub_u32 s{sT+3}, s{sR}, {o['wk0']}")
                a(f"s_cmp_lt_u32 s{sT+3}, 24")
                a(f"s_cselect_b32 s{sT+4}, 1, 0")
            a(f"s_cmp_eq_u32 s{sX}, 0")
            a(f"s_cselect_b32 vcc_lo, s{sT+4}, 0")
            a("s_mov_b32 vcc_hi, 0")
        while self.issued < o["ring"]: self.issue()
        self.stamp(2)
        a("s_barrier")
        self.stamp(3)
        for t in range(3): a(f"ds_read_b128 {vr(16+4*t)}, v1 offset:{L_Q+128*t}")
        a("s_waitcnt lgkmcnt(0)")
        g = 0
        while g < 32:
            lag = self.issued // 3 - g
            n = 2 if lag > (max(W, o["Wk"] or 0) + 2) // 3 + 1 else 1
            for _ in range(n):
                if g < 32: self.consumeK(g); g += 1
            if g < 32:
                for _ in range(3): self.issue()
        self.maxslot = 28
        assert all(s < 28 for s in self.slot.values())
        self.red_high3("v_max_f32", 15, 13)
        a(f"s_lshl_b32 s{sT}, s{sW}, 2")
        a(f"v_mov_b32 v14, s{sT}")
        a("s_mov_b64 exec, 1")
        a(f"ds_write_b32 v14, v15 offset:{L_SM}")
        a("s_mov_b64 exec, -1")
        for _ in range(o["burst3"]): self.issue(throttle=False)
        a("s_waitcnt lgkmcnt(0)")
        self.stamp(4)
        a("s_barrier")
        self.stamp(5)
        a("v_mov_b32 v13, 0")
        a(f"ds_read_b128 v[8:11], v13 offset:{L_SM}")
        a(f"ds_read_b32 v16, v13 offset:{L_SM+32}")
        self.read_frags(176)
        a("s_waitcnt lgkmcnt(10)")
        a(f"v_readfirstlane_b32 s{sLOC}, v16")
        a("v_max3_f32 v15, v8, v9, v10")
        a("v_max_f32 v15, v15, v11")
        l2e = hx(f2u(1.4426950408889634))
        for g in range(32):
            a(f"v_sub_f32 v{32+g}, v{32+g}, v15")
            a(f"v_mul_f32 v{32+g}, {l2e}, v{32+g}")
            a(f"v_exp_f32 v{32+g}, v{32+g}")
            if g == 2: a("v_add_f32 v13, v32, v33")
            elif g > 2: a(f"v_add_f32 v13, v13, v{32+g-1}")
            if g % 11 == 10: self.issue()
        a("v_add_f32 v13, v13, v63")
        self.red_high3("v_add_f32", 13, 15)
        a("s_mov_b64 exec, 1")
        a(f"ds_write_b32 v14, v13 offset:{L_SM+16}")
        a("s_mov_b64 exec, -1")
        for _ in range(o["burst4"]): self.issue(throttle=False)
        a("s_waitcnt lgkmcnt(0)")
        a("s_barrier")
        self.stamp(6)
        a("v_mov_b32 v13, 0")
        a(f"ds_read_b128 v[8:11], v13 offset:{L_SM+16}")
        a("s_waitcnt lgkmcnt(0)")
        a("v_add_f32 v8, v8, v9"); a("v_add_f32 v10, v10, v11"); a("v_add_f32 v13, v8, v10")
        a("v_rcp_f32 v13, v13")
        for g in range(32):
            a(f"v_mul_f32 v{32+g}, v{32+g}, v13")
            a(f"v_cvt_pk_bf16_f32 v{32+g}, v{32+g}, v{32+g}")
            if g % 16 == 15: self.issue()
        while self.issued % 3: self.issue()
        g = 0
        while g < 32:
            lag = (self.issued - 96) // 3 - g
            if self.issued >= 192:
                self.consumeV(g, fine=True); g += 1
                continue
            Wc = o["W2"] if (o["W2"] and self.issued >= o["w2from"]) else W
            keep = (max(Wc, o["Wk"] or 0) + 2) // 3 + 1
            n = 2 if lag > keep else (1 if lag == keep else 0)
            for _ in range(n): self.consumeV(g); g += 1
            for _ in range(3): self.issue()
        a(f"s_mul_i32 s{sT}, s{sW}, 3072")
        a(f"v_add_u32 v4, s{sT}, v3")
        for t in range(3): a(f"ds_write_b128 v4, {vr(16+4*t)} offset:{L_OP+1024*t}")
        a("s_waitcnt lgkmcnt(0)")
        self.stamp(7)
        a("s_barrier")
        if o["notail"]: a("s_branch L_done")
        a(f"s_cmp_lg_u32 s{sX}, 0")
        a("s_cbranch_scc1 L_done")
        a(f"s_mov_b32 s{sT+10}, s{sW}")
        a("s_branch L_grp0")

        a("L_helper:")
        a(f"s_cmp_lg_u32 s{sW}, 4")
        a("s_cbranch_scc1 L_h123")
        a(f"s_cmp_ge_u32 s{sR}, 24")
        a("s_cbranch_scc1 L_qchk")
        a("v_and_b32 v4, 7, v0")
        a(f"v_mul_u32_u24 v4, {XRS}, v4")
        a("v_lshl_add_u32 v4, v2, 4, v4")
        a(f"s_mul_i32 s{sT+5}, s{sT+3}, 640")
        a(f"v_add_u32 v4, s{sT+5}, v4")
        for kb in range(5): a(f"ds_read_b128 {vr(12+4*kb)}, v4 offset:{L_XN+128*kb}")
        for kb in range(5):
            a(f"s_waitcnt vmcnt({8*(4-kb)})")
            self.transpose(64 + 32 * kb, 224)
            if kb == 0: a("s_waitcnt lgkmcnt(0)")
            for m in range(8):
                c = "0" if kb == 0 else vr(32 + 4 * m)
                a(f"v_mfma_f32_16x16x32_bf16 {vr(32+4*m)}, {vr(12+4*kb)}, {vr(224+4*m)}, {c}")
        self.combineB([32 + 4 * m for m in range(8)], [4 + m for m in range(8)])
        a("L_qchk:")
        if o["noq"]:
            a(f"s_mov_b32 s{sT+9}, 0")
            a("s_branch L_noq0")
        a("v_lshlrev_b32 v13, 5, v0")
        a("s_mov_b64 exec, 0xff")
        ld = f"buffer_load_dword v14, v13, {srd(srdDBG)}, 0 offen"
        self.poll("L_qwait", [ld + " sc1"], None, None, first=[ld] if o["plainfirst"] else None, cmp="v_cmp_gt_u32 vcc, 8, v14")
        a(f"s_getreg_b32 s{sT+9}, hwreg(HW_REG_XCC_ID, 0, 4)")
        a(f"s_lshl_b32 s{sT+6}, s{sX}, 5")
        a(f"s_add_u32 s{sT+6}, s{sT+6}, s{sR}")
        a(f"s_lshl_b32 s{sT+6}, s{sT+6}, 2")
        a(f"s_add_u32 s{sT+6}, s{sT+6}, {TBUF}")
        a(f"v_mov_b32 v12, s{sT+9}")
        a("s_mov_b64 exec, -1")
        a(f"s_cmp_ge_u32 s{sR}, 24")
        a("s_cbranch_scc1 L_qsig")
        a(f"s_mul_i32 s{sT+5}, s{sX}, 24")
        a(f"s_add_u32 s{sT+5}, s{sT+5}, s{sR}")
        a(f"s_lshl_b32 s{sT+5}, s{sT+5}, 11")
        a(f"s_add_u32 s{sT+5}, s{sT+5}, {QBUF}")
        for q in range(2): a(f"buffer_store_dwordx4 {vr(4+4*q)}, v3, {srd(srdWS)}, s{sT+5} offen offset:{1024*q} sc1")
        a("L_qsig:")
        a("s_mov_b64 exec, 1")
        a(f"buffer_store_dword v12, v3, {srd(srdWS)}, s{sT+6} offen sc1")
        a("s_mov_b64 exec, -1")
        a("L_noq0:")
        self.stamp(2)
        self.mksrd(srdWt, 12, 0 if o["nowo"] else 7864320)
        a(f"s_cmp_ge_u32 s{sR}, 30")
        a(f"s_cselect_b32 s{srdWt+2}, 0, s{srdWt+2}")
        a(f"s_mul_i32 s{sT+3}, s{sR}, 26")
        a(f"s_lshr_b32 s{sT+3}, s{sT+3}, 8")
        a(f"s_mul_i32 s{sT+4}, s{sT+3}, 10")
        a(f"s_sub_u32 s{sT+4}, s{sR}, s{sT+4}")
        a(f"s_mul_i32 s{sT+5}, s{sX}, 3")
        a(f"s_add_u32 s{sT+3}, s{sT+3}, s{sT+5}")
        a(f"s_mul_i32 s{sT+5}, s{sT+3}, {256*1280}")
        a(f"s_lshl_b32 s{sT+6}, s{sT+4}, 7")
        a(f"s_add_u32 s{sT+5}, s{sT+5}, s{sT+6}")
        a(f"v_mul_u32_u24 v15, {8*1280}, v2")
        a("v_add_u32 v15, v15, v1")
        ow = o["ow"]
        def woblock(kb):
            for e in range(8):
                if e % 4 == 0: a(f"s_add_u32 s{sT+6}, s{sT+5}, {(64*kb + e) * 1280}")
                if e >= ow: a(f"s_waitcnt vmcnt({ow-1})")
                a(f"buffer_load_dwordx4 {vr(216+4*e)}, v15, {srd(srdWt)}, s{sT+6} offen offset:{(e%4)*1280} {o['wpol']}")
            a("s_waitcnt vmcnt(0)")
            self.transpose(216, 48 + 32 * kb)
        for kb in range(o["wopre"]): woblock(kb)
        if o["noq"]:
            a("s_barrier")
            a("s_branch L_noq")
        a("v_lshrrev_b32 v8, 3, v0")
        a("v_lshl_add_u32 v8, v8, 10, v1")
        a(f"s_and_b32 s{sT+6}, s{sR}, 3")
        a(f"s_mul_i32 s{sT+6}, s{sT+6}, 3")
        a(f"s_mul_i32 s{sT+7}, s{sX}, 24")
        a(f"s_add_u32 s{sT+6}, s{sT+6}, s{sT+7}")
        a(f"s_lshl_b32 s{sT+6}, s{sT+6}, 11")
        self.swapbits(sT + 7, sB, sT + 8)
        a(f"s_lshl_b32 s{sT+7}, s{sT+7}, 7")
        a(f"s_add_u32 s{sT+6}, s{sT+6}, s{sT+7}")
        a(f"s_add_u32 s{sT+10}, s{sT+6}, {QBUF}")
        a(f"s_add_u32 s{sT+11}, s{sT+6}, {QBUF + 12*2048}")
        a("v_lshrrev_b32 v9, 4, v0")
        a("v_lshl_add_u32 v9, v9, 7, v1")
        a("v_and_b32 v10, 8, v0")
        a("v_add_u32 v9, v9, v10")
        a("s_mov_b32 exec_hi, 0xffff")
        self.poll("L_pq", [f"buffer_load_dwordx4 {vr(16+4*rb)}, v8, {srd(srdWS)}, s{sT+10+rb} offen sc1" for rb in range(2)],
                  range(16, 24), 4)
        for j in range(4): a(f"v_add_f32 v{16+j}, v{16+j}, v{20+j}")
        a("v_cvt_pk_bf16_f32 v16, v16, v17")
        a("v_cvt_pk_bf16_f32 v17, v18, v19")
        a(f"ds_write_b64 v9, v[16:17] offset:{L_Q}")
        a("s_mov_b64 exec, -1")
        a("s_waitcnt lgkmcnt(0)")
        self.stamp(3)
        a("s_barrier")
        a(f"s_mov_b32 s{sT+6}, {TBUF}")
        ld = f"buffer_load_dwordx4 v[16:19], v3, {srd(srdWS)}, s{sT+6} offen"
        self.poll("L_pt", [ld + " sc1"], range(16, 20), 4, first=[ld] if o["plainfirst"] else None)
        a("L_noq:")
        for k in range(4): a(f"v_xor_b32 v{16+k}, s{sT+9}, v{16+k}")
        a("v_or3_b32 v16, v16, v17, v18")
        a("v_or_b32 v16, v16, v19")
        a("v_cmp_ne_u32 vcc, 0, v16")
        a(f"s_lshl_b32 s{sT+6}, s{sX}, 3")
        a(f"s_lshr_b64 s[{sT+12}:{sT+13}], vcc, s{sT+6}")
        a(f"s_and_b32 s{sT+12}, s{sT+12}, 0xff")
        a(f"s_cselect_b32 s{sLOC}, 0, 1")
        a(f"v_mov_b32 v10, s{sLOC}")
        a("v_mov_b32 v11, 0")
        a(f"ds_write_b32 v11, v10 offset:{L_SM+32}")
        a("s_waitcnt lgkmcnt(0)")
        a("s_barrier")
        self.read_frags(176)
        a("s_waitcnt lgkmcnt(0)")
        a("s_barrier")
        for kb in range(o["wopre"], 4): woblock(kb)
        a(f"s_lshl_b32 s{sT+6}, s{sT+3}, 12")
        a(f"s_mul_i32 s{sT+7}, s{sT+3}, 20480")
        a(f"s_lshl_b32 s{sT+8}, s{sT+4}, 11")
        a(f"s_add_u32 s{sT+7}, s{sT+7}, s{sT+8}")
        a(f"s_add_u32 s{sT+7}, s{sT+7}, {YBUF}")
        self.stamp(6)
        a("s_barrier")
        if o["notail"]: a("s_branch L_done")
        a(f"s_cmp_ge_u32 s{sR}, 30")
        a("s_cbranch_scc1 L_h0done")
        self.poll("L_po", [f"buffer_load_dwordx4 {vr(16+4*kb)}, v3, {srd(srdWS)}, s{sT+6} offen offset:{OBUF+1024*kb} {o['pollld']}" for kb in range(4)],
                  range(16, 32), 4)
        self.stamp(8)
        for m in range(8):
            for kb in range(4):
                c = "0" if kb == 0 else vr(216 + 4 * m)
                a(f"v_mfma_f32_16x16x32_bf16 {vr(216+4*m)}, {vr(16+4*kb)}, {vr(48+32*kb+4*m)}, {c}")
            if m >= 2: self.combineB([216 + 4 * (m - 2)], [32 + m - 2])
            if m == 5: a(f"buffer_store_dwordx4 v[32:35], v3, {srd(srdWS)}, s{sT+7} offen sc1")
        self.combineB([216 + 24, 216 + 28], [38, 39])
        a(f"buffer_store_dwordx4 v[36:39], v3, {srd(srdWS)}, s{sT+7} offen offset:1024 sc1")
        self.stamp(9)
        a("L_h0done:")
        a(f"s_cmp_lg_u32 s{sX}, 0")
        a("s_cbranch_scc1 L_done")
        if o["b5b"]: a("s_barrier")
        a(f"s_mov_b32 s{sT+10}, 8")
        a("s_branch L_grp0")

        a("L_h123:")
        wk0 = o["wk0"]
        a(f"s_sub_u32 s{sT+3}, s{sR}, {wk0}")
        a(f"s_cmp_lt_u32 s{sT+3}, 24")
        a(f"s_cselect_b32 s{sT+4}, 1, 0")
        a(f"s_cmp_eq_u32 s{sX}, 0")
        a(f"s_cselect_b32 s{sT+4}, s{sT+4}, 0")
        a(f"s_sub_u32 s{sT+5}, s{sW}, 5")
        hw = o["hw"]
        def stage(tag, ptr, nbytes, rstride, base_expr, blkstep, first, last):
            a(f"s_cmp_eq_u32 s{sT+4}, 0")
            a(f"s_cbranch_scc1 {tag}_e")
            self.mksrd(srdWt, ptr, nbytes)
            a(f"v_mul_u32_u24 v7, {rstride}, v2")
            a("v_add_u32 v7, v7, v1")
            a(f"s_mul_i32 s{sT+6}, s{sT+3}, {base_expr}")
            a(f"s_add_u32 s{sT+7}, s{sT+5}, {first}")
            a(f"{tag}:")
            a(f"s_mul_i32 s{sT+8}, s{sT+7}, {blkstep}")
            a(f"s_add_u32 s{sT+8}, s{sT+8}, s{sT+6}")
            for e in range(8):
                if e >= hw: a(f"s_waitcnt vmcnt({hw-1})")
                a(f"buffer_load_dwordx4 {vr(64+4*e)}, v7, {srd(srdWt)}, s{sT+8} offen {o['wpol']}")
                if e < 7: a(f"s_add_u32 s{sT+8}, s{sT+8}, {8*rstride}")
            a(f"s_lshl_b32 s{sT+8}, s{sT+7}, 13")
            a(f"s_add_u32 s{sT+8}, s{sT+8}, {L_W}")
            a(f"v_add_u32 v8, s{sT+8}, v3")
            a("s_waitcnt vmcnt(0) lgkmcnt(0)")
            self.transpose(64, 128)
            for m in range(8): a(f"ds_write_b128 v8, {vr(128+4*m)} offset:{1024*m}")
            a(f"s_add_u32 s{sT+7}, s{sT+7}, 3")
            a(f"s_cmp_lt_u32 s{sT+7}, {last}")
            a(f"s_cbranch_scc1 {tag}")
            a("s_waitcnt lgkmcnt(0)")
            a(f"{tag}_e:")
        sp = o["w1split"]
        if sp and not o["skip1"]: stage("L_st0", 16, 1966080, 3072, 128, 64 * 3072, 0, sp)
        a("s_barrier")
        if not o["skip1"]: stage("L_st1", 16, 1966080, 3072, 128, 64 * 3072, sp, 10)
        self.stamp(4)
        a("s_barrier")
        a("v_mov_b32 v13, 0")
        a(f"ds_read_b32 v16, v13 offset:{L_SM+32}")
        self.read_frags(176)
        a("s_waitcnt lgkmcnt(0)")
        a(f"v_readfirstlane_b32 s{sLOC}, v16")
        a("s_barrier")
        if not o["skip2"]: stage("L_st2", 18, 1966080, 1280, 64 * 1280, 128, 0, 10)
        a("v_bfe_u32 v8, v0, 2, 1")
        a("v_lshl_add_u32 v8, v8, 4, v6")
        a("v_and_b32 v9, 3, v0")
        a("v_lshlrev_b32 v9, 2, v9")
        a("v_lshl_add_u32 v8, v8, 4, v9")
        a(f"s_lshl_b32 s{sT+6}, s{sT+5}, 10")
        a(f"s_add_u32 s{sT+6}, s{sT+6}, {L_OP}")
        a(f"v_add_u32 v8, s{sT+6}, v8")
        a("v_add_u32 v9, 640, v8")
        a("v_and_b32 v10, 3, v6")
        a("v_lshlrev_b32 v10, 8, v10")
        a("v_lshrrev_b32 v11, 5, v0")
        a("v_lshl_add_u32 v10, v11, 7, v10")
        a("v_and_b32 v11, 7, v0")
        a("v_lshl_add_u32 v10, v11, 1, v10")
        a(f"s_mul_i32 s{sT+6}, s{sH}, 3")
        a(f"s_add_u32 s{sT+6}, s{sT+6}, s{sT+5}")
        a(f"s_lshl_b32 s{sT+6}, s{sT+6}, 10")
        a(f"s_lshl4_add_u32 s{sT+6}, s{sB}, s{sT+6}")
        self.stamp(6)
        a("s_barrier")
        if o["notail"]: a("s_branch L_done")
        a("ds_read2st64_b32 v[16:17], v8 offset0:0 offset1:12")
        a("ds_read2st64_b32 v[18:19], v9 offset0:0 offset1:12")
        a("ds_read2st64_b32 v[20:21], v8 offset0:24 offset1:36")
        a("ds_read2st64_b32 v[22:23], v9 offset0:24 offset1:36")
        a("s_waitcnt lgkmcnt(2)")
        a("v_add_f32 v16, v16, v17"); a("v_add_f32 v18, v18, v19")
        a("s_waitcnt lgkmcnt(0)")
        a("v_add_f32 v20, v20, v21"); a("v_add_f32 v22, v22, v23")
        a("v_add_f32 v16, v16, v18"); a("v_add_f32 v20, v20, v22")
        a("v_add_f32 v16, v16, v20")
        a("v_mov_b32_dpp v17, v16 quad_perm:[1,0,3,2] row_mask:0xf bank_mask:0xf")
        a("v_cvt_pk_bf16_f32 v16, v16, v17")
        a("s_mov_b32 exec_lo, 0x55555555")
        a("s_mov_b32 exec_hi, 0x55555555")
        self.pub("L_pubo", [f"buffer_store_dword v16, v10, {srd(srdWS)}, s{sT+6} offen offset:{OBUF}"])
        a("s_mov_b64 exec, -1")
        self.stamp(8)
        a(f"s_cmp_lg_u32 s{sX}, 0")
        a("s_cbranch_scc1 L_done")
        a(f"s_cmp_eq_u32 s{sW}, 7")
        a(f"s_cselect_b32 s{sT+10}, 4, 7")

        a("L_grp0:")
        a(f"s_sub_u32 s{sT+11}, s{sR}, {wk0}")
        a(f"s_lshr_b32 s{sT+1}, s{sW}, 2")
        a(f"s_and_b32 s{sT+2}, s{sW}, 3")
        a(f"s_lshl_b32 s{sT+3}, s{sT+1}, 1")
        a(f"s_xor_b32 s{sT+2}, s{sT+2}, s{sT+3}")
        a(f"s_mul_i32 s{sT+16}, s{sT+2}, 3")
        a(f"s_cmp_eq_u32 s{sT+2}, 3")
        a(f"s_cselect_b32 s{sT+16}, 8, s{sT+16}")
        a(f"s_cmp_lt_u32 s{sT+2}, 2")
        a(f"s_cselect_b32 s{sT+17}, 1, 0")
        a(f"s_lshl_b32 s{sT+3}, s{sT+16}, 13")
        a(f"s_lshl_b32 s{sT+4}, s{sT+1}, 12")
        a(f"s_add_u32 s{sT+3}, s{sT+3}, s{sT+4}")
        a(f"s_add_u32 s{sT+3}, s{sT+3}, {L_W}")
        a(f"v_add_u32 v4, s{sT+3}, v3")
        for k in range(2):
            for u in range(4): a(f"ds_read_b128 {vr(216+16*k+4*u)}, v4 offset:{8192*k+1024*u}")
        a(f"s_cmp_eq_u32 s{sT+17}, 0")
        a("s_cbranch_scc1 L_no3a")
        for u in range(4): a(f"ds_read_b128 {vr(160+4*u)}, v4 offset:{16384+1024*u}")
        a("L_no3a:")
        a(f"s_mul_i32 s{sT+2}, s{sT+11}, 20480")
        a(f"s_lshl_b32 s{sT+16}, s{sT+16}, 11")
        a(f"s_add_u32 s{sT+16}, s{sT+16}, s{sT+2}")
        a(f"s_lshl_b32 s{sT+1}, s{sT+1}, 10")
        a(f"s_add_u32 s{sT+16}, s{sT+16}, s{sT+1}")
        a(f"s_add_u32 s{sT+16}, s{sT+16}, {FBUF}")
        self.mksrd(srdOUT, 20, 10240)
        a("v_lshrrev_b32 v6, 3, v0")
        a("v_mul_u32_u24 v15, 20480, v6")
        a("v_add_u32 v15, v15, v1")
        a(f"s_mul_i32 s{sT+9}, s{sW}, 2560")
        a(f"s_add_u32 s{sT+9}, s{sT+9}, {HBUF}")
        a("v_lshlrev_b32 v8, 3, v0")
        a("v_bfe_u32 v10, v0, 2, 1")
        a("v_bfe_u32 v11, v0, 3, 1")
        a("v_lshl_add_u32 v10, v10, 1, v11")
        a(f"v_xor_b32 v11, s{sW}, v10")
        a("v_lshlrev_b32 v11, 5, v11")
        a("v_lshl_add_u32 v10, v10, 8, v11")
        a("v_and_b32 v11, 3, v0")
        a("v_lshl_add_u32 v10, v11, 3, v10")
        a("v_lshrrev_b32 v11, 4, v0")
        a("v_lshl_add_u32 v10, v11, 10, v10")
        a("v_bfe_u32 v11, v0, 3, 1")
        a("v_bfe_u32 v16, v0, 4, 1")
        a("v_lshl_add_u32 v11, v11, 1, v16")
        a(f"v_xor_b32 v16, s{sW}, v11")
        a("v_lshlrev_b32 v16, 5, v16")
        a("v_lshl_add_u32 v11, v11, 8, v16")
        a("v_and_b32 v16, 7, v0")
        a("v_lshl_add_u32 v11, v16, 2, v11")
        a("v_lshrrev_b32 v16, 5, v0")
        a("v_lshl_add_u32 v11, v16, 10, v11")
        a("v_lshrrev_b32 v5, 5, v0")
        a("v_bfe_u32 v16, v0, 3, 1")
        a("v_lshl_add_u32 v5, v5, 1, v16")
        a("v_and_b32 v16, 7, v0")
        a(f"v_mul_u32_u24 v7, {SRS}, v16")
        a("v_lshl_add_u32 v7, v2, 4, v7")
        a("v_xor_b32 v16, v16, v5")
        a("v_lshlrev_b32 v16, 5, v16")
        a("v_lshl_add_u32 v5, v5, 8, v16")
        a("v_and_b32 v16, 16, v0")
        a("v_add_u32 v5, v5, v16")
        a("v_bfe_u32 v16, v0, 4, 1")
        a("v_lshrrev_b32 v17, 5, v0")
        a("v_lshlrev_b32 v16, 2, v16")
        a("v_lshl_add_u32 v16, v17, 1, v16")
        a("v_bfe_u32 v17, v0, 3, 1")
        a("v_add_u32 v16, v16, v17")
        a(f"v_mul_u32_u24 v16, {SRS}, v16")
        a("v_lshrrev_b32 v17, 3, v1")
        a(f"s_lshl_b32 s{sT+1}, s{sW}, 4")
        a(f"v_add3_u32 v16, v16, v17, s{sT+1}")
        a(f"s_mul_i32 s{sT}, s{sR}, 5")
        a(f"s_add_u32 s{sT}, s{sT}, s{sT+10}")
        a(f"s_lshr_b32 s{sT+1}, s{sT}, 3")
        a(f"s_and_b32 s{sT+2}, s{sT}, 7")
        self.swapbits(sT + 3, sT + 2, sT + 4)
        a(f"s_lshl_b32 s{sT+12}, s{sT}, 7")
        a(f"s_add_u32 s{sT+12}, s{sT+12}, {YBUF}")
        a(f"s_add_u32 s{sT+13}, s{sT+12}, {8*20480}")
        a(f"s_add_u32 s{sT+14}, s{sT+12}, {16*20480}")
        a(f"s_mul_i32 s{sT+4}, s{sT+3}, 1280")
        a(f"s_lshr_b32 s{sT+5}, s{sT+1}, 1")
        a(f"s_lshl_b32 s{sT+5}, s{sT+5}, 7")
        a(f"s_add_u32 s{sT+4}, s{sT+4}, s{sT+5}")
        a(f"s_and_b32 s{sT+5}, s{sT+1}, 1")
        a(f"s_lshl3_add_u32 s{sT+4}, s{sT+5}, s{sT+4}")
        a("v_lshrrev_b32 v9, 4, v0")
        a("v_lshl_add_u32 v12, v9, 1, v1")
        a(f"v_add_u32 v12, s{sT+4}, v12")
        a("v_lshlrev_b32 v9, 5, v9")
        a("v_lshrrev_b32 v17, 2, v1")
        a("v_add_u32 v9, v9, v17")
        a(f"s_mul_i32 s{sT+15}, s{sT+3}, 2560")
        a(f"s_lshl_b32 s{sT+5}, s{sT+1}, 7")
        a(f"s_add_u32 s{sT+15}, s{sT+15}, s{sT+5}")
        a(f"s_add_u32 s{sT+15}, s{sT+15}, {HBUF}")
        a(f"s_cmp_ge_u32 s{sT+10}, 5")
        a("s_cbranch_scc1 L_nored0")
        a(f"buffer_load_ushort v13, v12, {srd(srdX)}, 0 offen")
        if o["b5b"]: a("s_barrier")
        self.poll("L_py", [f"buffer_load_dwordx4 {vr(64+4*i)}, v15, {srd(srdWS)}, s{sT+12+i} offen sc1" for i in range(3)],
                  range(64, 76), 4)
        self.stamp(10)
        self.reduce24(64)
        a("v_cvt_pk_bf16_f32 v64, v64, v64")
        a("v_lshlrev_b32 v13, 16, v13")
        a("v_and_b32 v64, 0xffff0000, v64")
        a("v_add_f32 v14, v13, v64")
        a("v_cvt_pk_bf16_f32 v14, v14, v14")
        a("s_mov_b32 exec_lo, 0x00ff00ff")
        a("s_mov_b32 exec_hi, 0x00ff00ff")
        a("v_and_b32 v14, 0xffff0000, v14")
        self.pub("L_pubh", [f"buffer_store_dword v14, v9, {srd(srdWS)}, s{sT+15} offen"])
        a("s_mov_b64 exec, -1")
        for i in range(3): a(f"s_add_u32 s{sT+12+i}, s{sT+12+i}, {FBUF-YBUF}")
        a("s_branch L_nored1")
        a("L_nored0:")
        if o["b5b"]:
            a(f"s_cmp_eq_u32 s{sT+10}, 8")
            a("s_cbranch_scc1 L_nored1")
            a("s_barrier")
        a("L_nored1:")
        a(f"s_cmp_ge_u32 s{sT+11}, 24")
        a("s_cbranch_scc1 L_noffn")
        pl = o["pollld"]
        self.poll("L_ph", [f"buffer_load_dwordx4 v[40:43], v3, {srd(srdWS)}, s{sT+9} offen {pl}",
                           f"buffer_load_dwordx4 v[44:47], v3, {srd(srdWS)}, s{sT+9} offen offset:1024 {pl}",
                           f"buffer_load_dwordx2 v[48:49], v8, {srd(srdWS)}, s{sT+9} offen offset:2048 {pl}"],
                  range(40, 50), 4)
        self.stamp(11)
        self.layernorm()
        if o["fine"]: self.stamp(1)
        a(f"ds_write_b64 v10, v[32:33] offset:{L_XN}")
        a(f"ds_write_b64 v10, v[34:35] offset:{L_XN+4096}")
        a(f"ds_write_b32 v11, v36 offset:{L_XN+8192}")
        a("s_waitcnt lgkmcnt(0)")
        a("s_barrier")
        if o["fine"]: self.stamp(2)
        for kb in range(10): a(f"ds_read_b128 {vr(76+4*kb)}, v5 offset:{L_XN+1024*kb}")
        for kb in range(10):
            a(f"s_waitcnt lgkmcnt({9-kb})")
            c = "0" if kb == 0 else "v[116:119]"
            a(f"v_mfma_f32_16x16x32_bf16 v[116:119], {vr(76+4*kb)}, {vr(176+4*kb)}, {c}")
        if o["fine"]: self.stamp(3)
        self.combineB([116], [120])
        a("v_cvt_pk_bf16_f32 v120, v120, v120")
        a("v_and_b32 v120, 0xffff0000, v120")
        a(f"v_mul_f32 v121, {hx(f2u(-1.4426950408889634))}, v120")
        a("v_exp_f32 v121, v121")
        a("v_add_f32 v121, 1.0, v121")
        a("v_rcp_f32 v121, v121")
        a("v_mul_f32 v120, v120, v121")
        a("v_cvt_pk_bf16_f32 v120, v120, v120")
        a(f"ds_write_b16 v16, v120 offset:{L_SA}")
        a("s_waitcnt lgkmcnt(0)")
        if o["fine"]: self.stamp(4)
        a("s_barrier")
        if o["fine"]: self.stamp(5)
        a(f"ds_read_b128 v[120:123], v7 offset:{L_SA}")
        a(f"s_cmp_eq_u32 s{sT+17}, 0")
        a("s_waitcnt lgkmcnt(0)")
        for k in range(8):
            a(f"v_mfma_f32_16x16x32_bf16 {vr(76+4*k)}, v[120:123], {vr(216+4*k)}, 0")
        a("s_cbranch_scc1 L_no3b")
        for k in range(4):
            a(f"v_mfma_f32_16x16x32_bf16 {vr(124+4*k)}, v[120:123], {vr(160+4*k)}, 0")
        a("L_no3b:")
        self.combineB([76 + 4 * k for k in range(4)], [108 + k for k in range(4)])
        self.pub("L_pubf", [f"buffer_store_dwordx4 v[108:111], v3, {srd(srdWS)}, s{sT+16} offen"])
        self.combineB([92 + 4 * k for k in range(4)], [112 + k for k in range(4)])
        self.pub("L_pubg", [f"buffer_store_dwordx4 v[112:115], v3, {srd(srdWS)}, s{sT+16} offen offset:2048"])
        a(f"s_cmp_eq_u32 s{sT+17}, 0")
        a("s_cbranch_scc1 L_no3c")
        a(f"s_add_u32 s{sT+16}, s{sT+16}, 4096")
        self.combineB([124 + 4 * k for k in range(4)], [140 + k for k in range(4)])
        self.pub("L_pubi", [f"buffer_store_dwordx4 v[140:143], v3, {srd(srdWS)}, s{sT+16} offen"])
        a("L_no3c:")
        if o["fine"]: self.stamp(15)
        self.stamp(12)
        a("L_noffn:")
        a(f"s_cmp_ge_u32 s{sT+10}, 5")
        a("s_cbranch_scc1 L_done")
        self.poll("L_pf", [f"buffer_load_dwordx4 {vr(64+4*i)}, v15, {srd(srdWS)}, s{sT+12+i} offen {pl}" for i in range(3)],
                  range(64, 76), 4)
        self.stamp(13)
        self.reduce24(64)
        a("v_cvt_pk_bf16_f32 v64, v64, v64")
        a("v_and_b32 v64, 0xffff0000, v64")
        a("v_add_f32 v14, v14, v64")
        a("v_cvt_pk_bf16_f32 v14, v14, v14")
        a("s_mov_b32 exec_lo, 0x00ff00ff")
        a("s_mov_b32 exec_hi, 0x00ff00ff")
        a(f"buffer_store_short v14, v12, {srd(srdOUT)}, 0 offen")
        a("s_mov_b64 exec, -1")
        a("L_done:")
        if o["stamps"]:
            a("s_waitcnt vmcnt(0)")
            self.stamp(14)
            a(f"s_lshl_b32 s{sT}, s2, 3")
            a(f"s_add_u32 s{sT}, s{sT}, s{sW}")
            a(f"s_lshl_b32 s{sT}, s{sT}, 6")
            a(f"s_add_u32 s{sT}, s{sT}, {STAMP}")
            for k in range(16): a(f"v_mov_b32 v{16+k}, s{sST+k}")
            a("v_mov_b32 v4, 0")
            a("s_mov_b64 exec, 1")
            for k in range(4): a(f"buffer_store_dwordx4 {vr(16+4*k)}, v4, {srd(srdWS)}, s{sT} offen offset:{16*k}")
        a("L_end:")
        a("s_endpgm")
        body, nn = fix_hazards(self.L)
        head = open("cdna_kernels/" + NAME + ".s.ref").read().split("; Override launch")[0] if False else ""
        out = [f"; @launch grid=(256,1,1) block=(512,1,1) lds={LDS_BYTES}",
               '.amdgcn_target "amdgcn-amd-amdhsa--gfx950"', ".text", f".globl {NAME}_kernel", ".p2align 8",
               f".type {NAME}_kernel,@function"]
        out += [s if s.endswith(":") else "    " + s for s in body]
        out += ['.section .rodata,"a"', ".p2align 6", f".amdhsa_kernel {NAME}_kernel",
                "  .amdhsa_next_free_vgpr 256", "  .amdhsa_next_free_sgpr 102", "  .amdhsa_accum_offset 256",
                "  .amdhsa_group_segment_fixed_size 0", "  .amdhsa_kernarg_size 88", "  .amdhsa_user_sgpr_count 2",
                "  .amdhsa_user_sgpr_kernarg_segment_ptr 1", "  .amdhsa_system_sgpr_workgroup_id_x 1",
                "  .amdhsa_float_denorm_mode_32 3", ".end_amdhsa_kernel"]
        return "\n".join(out) + "\n"

def gen(**o): return G(**o).gen()

if __name__ == "__main__":
    kw = {}
    for s in sys.argv[2:]:
        k, v = s.split("=")
        try: v = eval(v)
        except Exception: pass
        kw[k] = v
    open(sys.argv[1], "w").write(gen(**kw))
```

```python
import struct, sys
from asmlib import fix_hazards

NAME = "sequential_preLN__sliding_block_cached__dense_activation_silu__decode"
f2u = lambda x: struct.unpack("<I", struct.pack("<f", x))[0]
hx = lambda x: "0x%08x" % (x & 0xffffffff)

OBUF = 0
YBUF = OBUF + 96 * 1024
HBUF = YBUF + 24 * 20480
FBUF = HBUF + 8 * 2560
CLR_END = FBUF + 24 * 20480
CLR_PER_WG = 4352
QBUF = 256 * CLR_PER_WG
TBUF = QBUF + 8 * 24 * 2048
WS_USED = TBUF + 1024
STAMP = 2 << 20
XRS = 1296
L_XN = 0
L_Q = L_XN + 8 * XRS
L_SM = L_Q + 384
L_OP = L_SM + 64
SRS = 144
L_SA = L_OP + 4 * 3072
L_W = L_SA + 8 * SRS
LDS_BYTES = L_W + 81920

sX, sR, sH, sB, sW = 26, 27, 28, 29, 30
srdK, srdV, srdX, srdWt, srdWS, srdDBG, srdOUT = 32, 36, 40, 44, 48, 52, 56
sPlo, sPhi, sLOC, sRot, sOff, sCnt = 80, 81, 82, 83, 84, 85
sT = 60
sST = 86
SPIN = 100000

def srd(n): return f"s[{n}:{n+3}]"
def vr(a, n=4): return f"v[{a}:{a+n-1}]" if n > 1 else f"v{a}"

class G:
    def __init__(self, **o):
        self.o = dict(W=5, rot=11, burst3=6, burst4=3, ring=48, stamps=False, local=True, pollld="sc1",
                      hw=4, ow=4, wk0=8, W2=None, w2from=168, kvpol="nt", wpol="nt", w1split=3, skip1=False, skip2=False, fine=False, ipre=False, noq=False, notail=False, noclr=False, nowq=False, nowo=False, nocomp=False, Wk=6, wkall=True, wopre=1, b5b=True, plainfirst=True, hold=0)
        self.o.update(o)
        self.L = []
        self.nst = 0

    def a(self, s): self.L.append(s)

    def stamp(self, k):
        if self.o["stamps"]:
            self.a(f"s_memrealtime s[{sT+18}:{sT+19}]")
            self.a("s_waitcnt lgkmcnt(0)")
            self.a(f"s_mov_b32 s{sST+k}, s{sT+18}")

    def mksrd(self, d, base, nbytes, off=None):
        a = self.a
        if off is None:
            a(f"s_mov_b32 s{d}, s{base}"); a(f"s_mov_b32 s{d+1}, s{base+1}")
        else:
            a(f"s_add_u32 s{d}, s{base}, {off}"); a(f"s_addc_u32 s{d+1}, s{base+1}, 0")
        a(f"s_mov_b32 s{d+2}, {nbytes}"); a(f"s_mov_b32 s{d+3}, 0x20000")

    def swapbits(self, d, x, t):
        a = self.a
        a(f"s_and_b32 s{d}, s{x}, 1")
        a(f"s_and_b32 s{t}, s{x}, 2")
        a(f"s_lshl1_add_u32 s{d}, s{t}, s{d}")
        a(f"s_lshr_b32 s{t}, s{x}, 1")
        a(f"s_and_b32 s{t}, s{t}, 2")
        a(f"s_add_u32 s{d}, s{d}, s{t}")

    def red_low3(self, op, v):
        a = self.a
        a(f"{op}_dpp v{v}, v{v}, v{v} quad_perm:[1,0,3,2] row_mask:0xf bank_mask:0xf")
        a(f"{op}_dpp v{v}, v{v}, v{v} quad_perm:[2,3,0,1] row_mask:0xf bank_mask:0xf")
        a(f"{op}_dpp v{v}, v{v}, v{v} row_half_mirror row_mask:0xf bank_mask:0xf")

    def red_high3(self, op, v, t):
        a = self.a
        a(f"{op}_dpp v{v}, v{v}, v{v} row_ror:8 row_mask:0xf bank_mask:0xf")
        a(f"v_mov_b32 v{t}, v{v}")
        a(f"v_permlane16_swap_b32 v{v}, v{t}")
        a(f"{op} v{v}, v{v}, v{t}")
        a(f"v_mov_b32 v{t}, v{v}")
        a(f"v_permlane32_swap_b32 v{v}, v{t}")
        a(f"{op} v{v}, v{v}, v{t}")

    def layernorm(self):
        a = self.a
        z = list(range(40, 50)); d = list(range(50, 60))
        a("v_add_f32 v60, v40, v41"); a("v_add_f32 v61, v42, v43"); a("v_add_f32 v62, v44, v45"); a("v_add_f32 v63, v46, v47")
        a("v_add_f32 v60, v60, v61"); a("v_add_f32 v62, v62, v63"); a("v_add_f32 v61, v48, v49")
        a("v_add_f32 v60, v60, v62"); a("v_add_f32 v60, v60, v61")
        self.red_low3("v_add_f32", 60); self.red_high3("v_add_f32", 60, 61)
        a(f"v_mul_f32 v60, {hx(f2u(1.0/640))}, v60")
        for i in range(10): a(f"v_sub_f32 v{d[i]}, v{z[i]}, v60")
        a("v_mul_f32 v61, v50, v50"); a("v_mul_f32 v62, v51, v51")
        for i in range(2, 10, 2):
            a(f"v_fmac_f32 v61, v{d[i]}, v{d[i]}"); a(f"v_fmac_f32 v62, v{d[i+1]}, v{d[i+1]}")
        a("v_cvt_pk_bf16_f32 v60, v60, v60")
        a("v_add_f32 v61, v61, v62")
        a("v_and_b32 v60, 0xffff0000, v60")
        fill = []
        for i in range(10): fill.append(f"v_sub_f32 v{d[i]}, v{z[i]}, v60")
        for i in range(5): fill.append(f"v_cvt_pk_bf16_f32 v{32+i}, v{d[2*i]}, v{d[2*i+1]}")
        for i in range(5):
            fill.append(f"v_lshlrev_b32 v{d[2*i]}, 16, v{32+i}"); fill.append(f"v_and_b32 v{d[2*i+1]}, 0xffff0000, v{32+i}")
        chain = ["v_add_f32_dpp v61, v61, v61 quad_perm:[1,0,3,2] row_mask:0xf bank_mask:0xf",
                 "v_add_f32_dpp v61, v61, v61 quad_perm:[2,3,0,1] row_mask:0xf bank_mask:0xf",
                 "v_add_f32_dpp v61, v61, v61 row_half_mirror row_mask:0xf bank_mask:0xf",
                 "v_add_f32_dpp v61, v61, v61 row_ror:8 row_mask:0xf bank_mask:0xf\nv_mov_b32 v62, v61",
                 "v_permlane16_swap_b32 v61, v62\nv_add_f32 v61, v61, v62\nv_mov_b32 v62, v61",
                 "v_permlane32_swap_b32 v61, v62\nv_add_f32 v61, v61, v62\n" + f"v_mul_f32 v61, {hx(f2u(1.0/640))}, v61\n"
                 "v_cvt_pk_bf16_f32 v61, v61, v61\nv_and_b32 v61, 0xffff0000, v61\n"
                 f"v_add_f32 v61, {hx(f2u(1e-5))}, v61\nv_cvt_pk_bf16_f32 v61, v61, v61\nv_and_b32 v61, 0xffff0000, v61\nv_sqrt_f32 v61, v61",
                 "v_cvt_pk_bf16_f32 v61, v61, v61\nv_and_b32 v61, 0xffff0000, v61\nv_rcp_f32 v61, v61"]
        for c in chain:
            for _ in range(2):
                if fill: a(fill.pop(0))
            for s in c.split("\n"): a(s)
        for s in fill: a(s)
        for i in range(10): a(f"v_mul_f32 v{d[i]}, v{d[i]}, v61")
        for i in range(5): a(f"v_cvt_pk_bf16_f32 v{32+i}, v{d[2*i]}, v{d[2*i+1]}")

    def transpose(self, raw, dst):
        for m in range(8):
            for d in range(4):
                self.a(f"v_perm_b32 v{dst+4*m+d}, v{raw+4*(2*d+1)+(m>>1)}, v{raw+4*(2*d)+(m>>1)}, s{sPhi if m & 1 else sPlo}")

    def combineB(self, accs, dsts):
        a = self.a
        for A in accs:
            a(f"v_permlane32_swap_b32 v{A}, v{A+2}")
            a(f"v_permlane32_swap_b32 v{A+1}, v{A+3}")
        for A, D in zip(accs, dsts):
            a(f"v_add_f32_dpp v{D}, v{A+2}, v{A} row_ror:8 row_mask:0xf bank_mask:0x3")
        for A, D in zip(accs, dsts):
            a(f"v_add_f32_dpp v{D}, v{A+1}, v{A+3} row_ror:8 row_mask:0xf bank_mask:0xc")

    def poll(self, name, loads, regs, tmp, first=None, cmp=None):
        a = self.a
        a(f"s_mov_b32 s{sCnt}, {SPIN}")
        if first:
            for s in first: a(s)
            a(f"s_branch {name}_c")
        a(f"{name}:")
        for s in loads: a(s)
        if first: a(f"{name}_c:")
        a(f"s_sub_u32 s{sCnt}, s{sCnt}, 1")
        a(f"s_cbranch_scc1 {name}_x")
        a("s_waitcnt vmcnt(0)")
        if cmp:
            a(cmp)
        else:
            regs = list(regs)
            a(f"v_max3_u32 v{tmp}, v{regs[0]}, v{regs[1]}, v{regs[2]}")
            regs = regs[3:]
            while len(regs) >= 2:
                a(f"v_max3_u32 v{tmp}, v{tmp}, v{regs[0]}, v{regs[1]}"); regs = regs[2:]
            if regs: a(f"v_max_u32 v{tmp}, v{tmp}, v{regs[0]}")
            a(f"v_cmp_eq_u32 vcc, -1, v{tmp}")
        a(f"s_cbranch_vccnz {name}")
        a(f"{name}_x:")
        a("s_waitcnt vmcnt(0)")

    def pub(self, name, stores):
        a = self.a
        if not self.o["local"]:
            for s in stores: a(s + " sc1")
            return
        a(f"s_cmp_eq_u32 s{sLOC}, 1")
        a(f"s_cbranch_scc1 {name}_l")
        for s in stores: a(s + " sc1")
        a(f"s_branch {name}_e")
        a(f"{name}_l:")
        for s in stores: a(s)
        a(f"{name}_e:")

    def reduce24(self, z):
        a = self.a
        for rr in range(4): a(f"v_add_f32 v{z+rr}, v{z+rr}, v{z+4+rr}")
        for rr in range(4): a(f"v_add_f32 v{z+rr}, v{z+rr}, v{z+8+rr}")
        a(f"v_permlane32_swap_b32 v{z}, v{z+2}")
        a(f"v_permlane32_swap_b32 v{z+1}, v{z+3}")
        a(f"v_add_f32 v{z}, v{z}, v{z+2}")
        a(f"v_add_f32 v{z+1}, v{z+1}, v{z+3}")
        a(f"v_permlane16_swap_b32 v{z}, v{z+1}")
        a(f"v_add_f32 v{z}, v{z}, v{z+1}")
        a(f"v_add_f32_dpp v{z}, v{z}, v{z} row_ror:8 row_mask:0xf bank_mask:0xf")

    def read_frags(self, dst):
        a = self.a
        a(f"s_lshl_b32 s{sT}, s{sW}, 10")
        a(f"s_add_u32 s{sT}, s{sT}, {L_W}")
        a(f"v_add_u32 v4, s{sT}, v3")
        a("v_add_u32 v5, 0x10000, v4")
        for k in range(10):
            if k < 8: a(f"ds_read_b128 {vr(dst+4*k)}, v4 offset:{8192*k}")
            else: a(f"ds_read_b128 {vr(dst+4*k)}, v5 offset:{8192*(k-8)}")

    def stream_setup(self):
        self.issued = 0; self.done = 0
        self.free = list(range(self.o["ring"])); self.slot = {}
        self.maxslot = self.o["ring"]

    def wait_out(self, n):
        if self.issued - self.done > n:
            self.a(f"s_waitcnt vmcnt({n})"); self.done = self.issued - n

    def issue(self, throttle=True):
        i = self.issued
        if i >= 192: return
        W = self.o["W"]
        if self.o["W2"] and i >= self.o["w2from"]: W = self.o["W2"]
        if throttle:
            Wk = self.o["Wk"]
            if Wk and Wk > W and self.issued - self.done > W - 1:
                self.nlab = getattr(self, "nlab", 0) + 1
                self.wait_out(Wk - 1)
                self.a(f"s_cbranch_vccnz L_wk{self.nlab}")
                self.a(f"s_waitcnt vmcnt({W-1})")
                self.a(f"L_wk{self.nlab}:")
            else:
                self.wait_out(W - 1)
        self.free.sort()
        s = self.free.pop(0); assert s < self.maxslot, (i, s)
        self.slot[i] = s
        t = i % 3
        if t == 0 and i > 0:
            self.a(f"s_add_u32 s{sOff}, s{sOff}, 3072")
            self.a(f"s_cmp_eq_u32 s{sOff}, 98304")
            self.a(f"s_cselect_b32 s{sOff}, 0, s{sOff}")
        r = 64 + 4 * s
        self.a(f"buffer_load_dwordx4 {vr(r)}, v12, {srd(srdK if i < 96 else srdV)}, s{sOff} offen offset:{128*t} {self.o['kvpol']}")
        self.issued += 1

    def consumeK(self, g):
        a = self.a
        self.wait_out(self.issued - 3 * (g + 1))
        base = [64 + 4 * self.slot[3 * g + t] for t in range(3)]
        acc = [32 + g, 13, 14]
        if self.o["nocomp"]:
            for t in range(3): self.free.append(self.slot.pop(3 * g + t))
            return
        for d in range(4):
            for t in range(3):
                c = "0" if d == 0 else f"v{acc[t]}"
                a(f"v_dot2_f32_bf16 v{acc[t]}, v{base[t]+d}, v{16+4*t+d}, {c}")
        for t in range(3): self.free.append(self.slot.pop(3 * g + t))
        a("v_add_f32 v13, v13, v14")
        a(f"v_add_f32 v{32+g}, v{32+g}, v13")
        self.red_low3("v_add_f32", 32 + g)
        if g & 1:
            p, q = 32 + g - 1, 32 + g
            a(f"v_cvt_pk_bf16_f32 v13, v{p}, v{q}")
            a(f"v_lshlrev_b32 v{p}, 16, v13"); a(f"v_and_b32 v{q}, 0xffff0000, v13")
            sc = hx(f2u(192 ** -0.5))
            a(f"v_mul_f32 v{p}, {sc}, v{p}"); a(f"v_mul_f32 v{q}, {sc}, v{q}")
            a(f"v_cvt_pk_bf16_f32 v13, v{p}, v{q}")
            a(f"v_lshlrev_b32 v{p}, 16, v13"); a(f"v_and_b32 v{q}, 0xffff0000, v13")
            if g == 1: a(f"v_max_f32 v15, v{p}, v{q}")
            else: a(f"v_max3_f32 v15, v15, v{p}, v{q}")

    def consumeV(self, g, fine=False):
        a = self.a
        A = 4 if g & 1 else 8
        for d in range(4): a(f"v_and_b32 v{A+d}, v{32+g}, v{28+d}")
        i0 = 96 + 3 * g
        if not fine: self.wait_out(self.issued - (i0 + 3))
        for t in range(3):
            if fine: self.wait_out(self.issued - (i0 + t + 1))
            s = self.slot.pop(i0 + t); self.free.append(s)
            c = "0" if g == 0 else vr(16 + 4 * t)
            a(f"v_mfma_f32_16x16x32_bf16 {vr(16+4*t)}, {vr(A)}, {vr(64+4*s)}, {c}")

    def gen(self):
        a = self.a; o = self.o
        W = o["W"]
        a(f"{NAME}_kernel:")
        a("s_cmp_ge_u32 s2, 256")
        a("s_cbranch_scc1 L_end")
        a("s_load_dwordx16 s[4:19], s[0:1], 0")
        a("s_load_dwordx4 s[20:23], s[0:1], 64")
        a("s_load_dwordx2 s[24:25], s[0:1], 80")
        if o["stamps"] or o["hold"]:
            a(f"s_memrealtime s[{sST}:{sST+1}]")
        a("v_lshrrev_b32 v4, 6, v0")
        a("v_and_b32 v0, 63, v0")
        a(f"s_and_b32 s{sX}, s2, 7")
        a(f"v_readfirstlane_b32 s{sW}, v4")
        a(f"s_lshr_b32 s{sR}, s2, 3")
        a(f"s_and_b32 s{sT}, s{sR}, 3")
        a(f"s_lshl2_add_u32 s{sH}, s{sX}, s{sT}")
        a(f"s_lshr_b32 s{sB}, s{sR}, 2")
        a("v_and_b32 v1, 7, v0")
        a("v_lshlrev_b32 v1, 4, v1")
        a("v_lshlrev_b32 v3, 4, v0")
        a("v_lshrrev_b32 v6, 3, v0")
        a(f"s_mul_i32 s{sT+1}, s{sW}, 1280")
        a("v_lshlrev_b32 v5, 2, v0")
        a(f"s_lshl_b32 s{sT}, s{sB}, 5")
        a(f"s_add_u32 s{sT}, s{sT}, s{sH}")
        a(f"s_mul_i32 s{sT}, s{sT}, 1572864")
        a(f"s_add_u32 s{sT}, s{sT}, {3072*384}")
        a(f"s_mul_i32 s{sOff}, s2, {o['rot']}")
        a(f"s_and_b32 s{sOff}, s{sOff}, 31")
        a(f"s_mul_i32 s{sOff}, s{sOff}, 3072")
        a(f"s_mul_i32 s{sT+2}, s{sW}, 98304")
        a("v_mul_u32_u24 v12, 384, v6")
        a(f"v_add3_u32 v12, v12, v1, s{sT+2}")
        a("s_waitcnt lgkmcnt(0)")
        if o["stamps"]:
            for k in range(1, 16): a(f"s_mov_b32 s{sST+k}, 0")
        self.mksrd(srdX, 4, 10240)
        self.mksrd(srdK, 6, 393216, f"s{sT}")
        a(f"buffer_load_dwordx4 v[32:35], v3, {srd(srdX)}, s{sT+1} offen")
        a(f"buffer_load_dword v36, v5, {srd(srdX)}, s{sT+1} offen offset:1024")
        a(f"s_cmp_ge_u32 s{sW}, 4")
        a("s_cbranch_scc1 L_hpro")
        self.stream_setup()
        for _ in range(W): self.issue(throttle=False)
        a("L_hpro:")
        self.mksrd(srdV, 8, 393216, f"s{sT}")
        self.mksrd(srdWS, 24, WS_USED if not o["stamps"] else 4 << 20)
        self.mksrd(srdWt, 10, 0 if o["nowq"] else 7864320)
        self.mksrd(srdDBG, 22, 256)
        a("v_lshrrev_b32 v2, 4, v0")
        a("v_and_b32 v7, 1, v6")
        a("v_lshl_add_u32 v2, v7, 2, v2")
        a(f"s_mov_b32 s{sPlo}, 0x05040100")
        a(f"s_mov_b32 s{sPhi}, 0x07060302")
        a(f"s_cmp_ge_u32 s{sW}, 4")
        a("s_cbranch_scc1 L_hpro2")
        a(f"s_waitcnt vmcnt({W})")
        a("s_branch L_ln1")
        a("L_hpro2:")
        a(f"s_cmp_eq_u32 s{sW}, 6")
        a("s_cbranch_scc1 L_clear")
        a(f"s_cmp_eq_u32 s{sW}, 7")
        a("s_cbranch_scc1 " + ("L_ipre" if o["ipre"] else "L_w0"))
        a(f"s_cmp_ge_u32 s{sR}, 24")
        a(f"s_cselect_b32 s{sT+3}, 5, 4")
        a(f"s_cmp_lg_u32 s{sW}, s{sT+3}")
        a("s_cbranch_scc1 L_w0")
        a(f"s_cmp_eq_u32 s{sW}, 5")
        a("s_cbranch_scc1 L_qclear")
        a(f"s_cmp_ge_u32 s{sR}, 12")
        a(f"s_cselect_b32 s{sT+3}, 1, 0")
        a(f"s_mul_i32 s{sT+4}, s{sT+3}, 12")
        a(f"s_sub_u32 s{sT+4}, s{sR}, s{sT+4}")
        a(f"s_mul_i32 s{sT+5}, s{sT+3}, {320*12288}")
        a(f"s_mul_i32 s{sT+6}, s{sX}, 1536")
        a(f"s_add_u32 s{sT+5}, s{sT+5}, s{sT+6}")
        a(f"s_lshl_b32 s{sT+6}, s{sT+4}, 7")
        a(f"s_add_u32 s{sT+5}, s{sT+5}, s{sT+6}")
        a(f"v_mul_u32_u24 v7, {8*12288}, v2")
        a("v_add_u32 v7, v7, v1")
        a(f"s_movk_i32 s{sT+6}, 12288")
        a(f"s_mov_b32 s{sT+7}, {57*12288}")
        for kb in range(5):
            for e in range(8):
                a(f"buffer_load_dwordx4 {vr(64+32*kb+4*e)}, v7, {srd(srdWt)}, s{sT+5} offen {o['wpol']}")
                if kb * 8 + e < 39: a(f"s_add_u32 s{sT+5}, s{sT+5}, s{sT+6 if e < 7 else sT+7}")
        a("s_waitcnt vmcnt(40)")
        a("s_branch L_ln1")
        a("L_qclear:")
        if o["noclr"]: a("s_branch L_w0")
        for k in range(4): a(f"v_mov_b32 v{8+k}, -1")
        a(f"s_lshl_b32 s{sT+3}, s{sX}, 3")
        a(f"s_add_u32 s{sT+3}, s{sT+3}, s{sR}")
        a(f"s_sub_u32 s{sT+3}, s{sT+3}, 24")
        a(f"s_mul_i32 s{sT+4}, s{sT+3}, 6144")
        a(f"s_add_u32 s{sT+4}, s{sT+4}, {QBUF}")
        for k in range(6):
            if k == 4: a(f"s_add_u32 s{sT+4}, s{sT+4}, 4096")
            a(f"buffer_store_dwordx4 v[8:11], v3, {srd(srdWS)}, s{sT+4} offen offset:{1024*(k%4)} sc1")
        a(f"s_lshl_b32 s{sT+4}, s{sT+3}, 4")
        a(f"s_add_u32 s{sT+4}, s{sT+4}, {TBUF}")
        a("s_mov_b64 exec, 1")
        a(f"buffer_store_dwordx4 v[8:11], v3, {srd(srdWS)}, s{sT+4} offen sc1")
        a(f"s_lshl_b32 s{sT+4}, s{sX}, 5")
        a("v_mov_b32 v7, 1")
        a("s_waitcnt vmcnt(0)")
        a(f"buffer_atomic_add v7, v3, {srd(srdDBG)}, s{sT+4} offen sc1")
        a("s_mov_b64 exec, -1")
        a("s_branch L_ln1")
        if o["ipre"]:
            a("L_ipre:")
            a(f"s_getpc_b64 s[{sT+4}:{sT+5}]")
            a("L_ipc:")
            a(f"s_sub_u32 s{sT+4}, s{sT+4}, L_ipc-{NAME}_kernel")
            a(f"s_subb_u32 s{sT+5}, s{sT+5}, 0")
            a(f"s_mov_b32 s{sT+6}, L_end-{NAME}_kernel")
            a(f"s_mov_b32 s{sT+7}, 0x20000")
            a(f"s_lshl_b32 s{sT+3}, s{sR}, 10")
            a(f"buffer_load_dwordx4 v[8:11], v3, s[{sT+4}:{sT+7}], s{sT+3} offen")
            a("s_branch L_w0")
        a("L_clear:")
        if o["noclr"]: a("s_branch L_w0")
        for k in range(4): a(f"v_mov_b32 v{8+k}, -1")
        a(f"s_mul_i32 s{sT+3}, s2, {CLR_PER_WG}")
        for k in range(4): a(f"buffer_store_dwordx4 v[8:11], v3, {srd(srdWS)}, s{sT+3} offen offset:{1024*k} sc1")
        a(f"s_add_u32 s{sT+3}, s{sT+3}, 4096")
        a("s_mov_b64 exec, 0xffff")
        a(f"buffer_store_dwordx4 v[8:11], v3, {srd(srdWS)}, s{sT+3} offen sc1")
        a("s_mov_b64 exec, -1")
        a("L_w0:")
        a("s_waitcnt vmcnt(0)")
        a("L_ln1:")
        for i in range(5):
            a(f"v_lshlrev_b32 v{40+2*i}, 16, v{32+i}"); a(f"v_and_b32 v{41+2*i}, 0xffff0000, v{32+i}")
        self.layernorm()
        a(f"s_mul_i32 s{sT+8}, s{sW}, {XRS}")
        a(f"v_add_u32 v8, s{sT+8}, v3")
        a(f"v_add_u32 v9, s{sT+8}, v5")
        a(f"ds_write_b128 v8, v[32:35] offset:{L_XN}")
        a(f"ds_write_b32 v9, v36 offset:{L_XN+1024}")
        a("s_waitcnt lgkmcnt(0)")
        a("s_barrier")
        self.stamp(1)
        a(f"s_cmp_ge_u32 s{sW}, 4")
        a("s_cbranch_scc1 L_helper")

        a("v_and_b32 v4, 1, v0")
        a("v_lshlrev_b32 v4, 4, v4")
        a("v_mov_b32 v7, 0xffff")
        a("v_lshlrev_b32 v4, v4, v7")
        a("v_bfe_u32 v7, v0, 1, 2")
        for d in range(4):
            a(f"v_cmp_eq_u32 vcc, {d}, v7")
            a(f"v_cndmask_b32 v{28+d}, 0, v4, vcc")
        if o["Wk"]:
            if o["wkall"]:
                a(f"s_mov_b32 s{sT+4}, 1")
            else:
                a(f"s_sub_u32 s{sT+3}, s{sR}, {o['wk0']}")
                a(f"s_cmp_lt_u32 s{sT+3}, 24")
                a(f"s_cselect_b32 s{sT+4}, 1, 0")
            a(f"s_cmp_eq_u32 s{sX}, 0")
            a(f"s_cselect_b32 vcc_lo, s{sT+4}, 0")
            a("s_mov_b32 vcc_hi, 0")
        while self.issued < o["ring"]: self.issue()
        self.stamp(2)
        a("s_barrier")
        self.stamp(3)
        for t in range(3): a(f"ds_read_b128 {vr(16+4*t)}, v1 offset:{L_Q+128*t}")
        a("s_waitcnt lgkmcnt(0)")
        g = 0
        while g < 32:
            lag = self.issued // 3 - g
            n = 2 if lag > (max(W, o["Wk"] or 0) + 2) // 3 + 1 else 1
            for _ in range(n):
                if g < 32: self.consumeK(g); g += 1
            if g < 32:
                for _ in range(3): self.issue()
        self.maxslot = 28
        assert all(s < 28 for s in self.slot.values())
        self.red_high3("v_max_f32", 15, 13)
        a(f"s_lshl_b32 s{sT}, s{sW}, 2")
        a(f"v_mov_b32 v14, s{sT}")
        a("s_mov_b64 exec, 1")
        a(f"ds_write_b32 v14, v15 offset:{L_SM}")
        a("s_mov_b64 exec, -1")
        for _ in range(o["burst3"]): self.issue(throttle=False)
        a("s_waitcnt lgkmcnt(0)")
        self.stamp(4)
        a("s_barrier")
        self.stamp(5)
        a("v_mov_b32 v13, 0")
        a(f"ds_read_b128 v[8:11], v13 offset:{L_SM}")
        a(f"ds_read_b32 v16, v13 offset:{L_SM+32}")
        self.read_frags(176)
        a("s_waitcnt lgkmcnt(10)")
        a(f"v_readfirstlane_b32 s{sLOC}, v16")
        a("v_max3_f32 v15, v8, v9, v10")
        a("v_max_f32 v15, v15, v11")
        l2e = hx(f2u(1.4426950408889634))
        for g in range(32):
            a(f"v_sub_f32 v{32+g}, v{32+g}, v15")
            a(f"v_mul_f32 v{32+g}, {l2e}, v{32+g}")
            a(f"v_exp_f32 v{32+g}, v{32+g}")
            if g == 2: a("v_add_f32 v13, v32, v33")
            elif g > 2: a(f"v_add_f32 v13, v13, v{32+g-1}")
            if g % 11 == 10: self.issue()
        a("v_add_f32 v13, v13, v63")
        self.red_high3("v_add_f32", 13, 15)
        a("s_mov_b64 exec, 1")
        a(f"ds_write_b32 v14, v13 offset:{L_SM+16}")
        a("s_mov_b64 exec, -1")
        for _ in range(o["burst4"]): self.issue(throttle=False)
        a("s_waitcnt lgkmcnt(0)")
        a("s_barrier")
        self.stamp(6)
        a("v_mov_b32 v13, 0")
        a(f"ds_read_b128 v[8:11], v13 offset:{L_SM+16}")
        a("s_waitcnt lgkmcnt(0)")
        a("v_add_f32 v8, v8, v9"); a("v_add_f32 v10, v10, v11"); a("v_add_f32 v13, v8, v10")
        a("v_rcp_f32 v13, v13")
        for g in range(32):
            a(f"v_mul_f32 v{32+g}, v{32+g}, v13")
            a(f"v_cvt_pk_bf16_f32 v{32+g}, v{32+g}, v{32+g}")
            if g % 16 == 15: self.issue()
        while self.issued % 3: self.issue()
        g = 0
        while g < 32:
            lag = (self.issued - 96) // 3 - g
            if self.issued >= 192:
                self.consumeV(g, fine=True); g += 1
                continue
            Wc = o["W2"] if (o["W2"] and self.issued >= o["w2from"]) else W
            keep = (max(Wc, o["Wk"] or 0) + 2) // 3 + 1
            n = 2 if lag > keep else (1 if lag == keep else 0)
            for _ in range(n): self.consumeV(g); g += 1
            for _ in range(3): self.issue()
        a(f"s_mul_i32 s{sT}, s{sW}, 3072")
        a(f"v_add_u32 v4, s{sT}, v3")
        for t in range(3): a(f"ds_write_b128 v4, {vr(16+4*t)} offset:{L_OP+1024*t}")
        a("s_waitcnt lgkmcnt(0)")
        self.stamp(7)
        a("s_barrier")
        if o["notail"]: a("s_branch L_done")
        a(f"s_cmp_lg_u32 s{sX}, 0")
        a("s_cbranch_scc1 L_done")
        a(f"s_mov_b32 s{sT+10}, s{sW}")
        a("s_branch L_grp0")

        a("L_helper:")
        a(f"s_cmp_lg_u32 s{sW}, 4")
        a("s_cbranch_scc1 L_h123")
        a(f"s_cmp_ge_u32 s{sR}, 24")
        a("s_cbranch_scc1 L_qchk")
        a("v_and_b32 v4, 7, v0")
        a(f"v_mul_u32_u24 v4, {XRS}, v4")
        a("v_lshl_add_u32 v4, v2, 4, v4")
        a(f"s_mul_i32 s{sT+5}, s{sT+3}, 640")
        a(f"v_add_u32 v4, s{sT+5}, v4")
        for kb in range(5): a(f"ds_read_b128 {vr(12+4*kb)}, v4 offset:{L_XN+128*kb}")
        for kb in range(5):
            a(f"s_waitcnt vmcnt({8*(4-kb)})")
            self.transpose(64 + 32 * kb, 224)
            if kb == 0: a("s_waitcnt lgkmcnt(0)")
            for m in range(8):
                c = "0" if kb == 0 else vr(32 + 4 * m)
                a(f"v_mfma_f32_16x16x32_bf16 {vr(32+4*m)}, {vr(12+4*kb)}, {vr(224+4*m)}, {c}")
        self.combineB([32 + 4 * m for m in range(8)], [4 + m for m in range(8)])
        a("L_qchk:")
        if o["noq"]:
            a(f"s_mov_b32 s{sT+9}, 0")
            a("s_branch L_noq0")
        a("v_lshlrev_b32 v13, 5, v0")
        a("s_mov_b64 exec, 0xff")
        ld = f"buffer_load_dword v14, v13, {srd(srdDBG)}, 0 offen"
        self.poll("L_qwait", [ld + " sc1"], None, None, first=[ld] if o["plainfirst"] else None, cmp="v_cmp_gt_u32 vcc, 8, v14")
        a(f"s_getreg_b32 s{sT+9}, hwreg(HW_REG_XCC_ID, 0, 4)")
        a(f"s_lshl_b32 s{sT+6}, s{sX}, 5")
        a(f"s_add_u32 s{sT+6}, s{sT+6}, s{sR}")
        a(f"s_lshl_b32 s{sT+6}, s{sT+6}, 2")
        a(f"s_add_u32 s{sT+6}, s{sT+6}, {TBUF}")
        a(f"v_mov_b32 v12, s{sT+9}")
        a("s_mov_b64 exec, -1")
        a(f"s_cmp_ge_u32 s{sR}, 24")
        a("s_cbranch_scc1 L_qsig")
        a(f"s_mul_i32 s{sT+5}, s{sX}, 24")
        a(f"s_add_u32 s{sT+5}, s{sT+5}, s{sR}")
        a(f"s_lshl_b32 s{sT+5}, s{sT+5}, 11")
        a(f"s_add_u32 s{sT+5}, s{sT+5}, {QBUF}")
        for q in range(2): a(f"buffer_store_dwordx4 {vr(4+4*q)}, v3, {srd(srdWS)}, s{sT+5} offen offset:{1024*q} sc1")
        a("L_qsig:")
        a("s_mov_b64 exec, 1")
        a(f"buffer_store_dword v12, v3, {srd(srdWS)}, s{sT+6} offen sc1")
        a("s_mov_b64 exec, -1")
        a("L_noq0:")
        self.stamp(2)
        self.mksrd(srdWt, 12, 0 if o["nowo"] else 7864320)
        a(f"s_cmp_ge_u32 s{sR}, 30")
        a(f"s_cselect_b32 s{srdWt+2}, 0, s{srdWt+2}")
        a(f"s_mul_i32 s{sT+3}, s{sR}, 26")
        a(f"s_lshr_b32 s{sT+3}, s{sT+3}, 8")
        a(f"s_mul_i32 s{sT+4}, s{sT+3}, 10")
        a(f"s_sub_u32 s{sT+4}, s{sR}, s{sT+4}")
        a(f"s_mul_i32 s{sT+5}, s{sX}, 3")
        a(f"s_add_u32 s{sT+3}, s{sT+3}, s{sT+5}")
        a(f"s_mul_i32 s{sT+5}, s{sT+3}, {256*1280}")
        a(f"s_lshl_b32 s{sT+6}, s{sT+4}, 7")
        a(f"s_add_u32 s{sT+5}, s{sT+5}, s{sT+6}")
        a(f"v_mul_u32_u24 v15, {8*1280}, v2")
        a("v_add_u32 v15, v15, v1")
        ow = o["ow"]
        def woblock(kb):
            for e in range(8):
                if e % 4 == 0: a(f"s_add_u32 s{sT+6}, s{sT+5}, {(64*kb + e) * 1280}")
                if e >= ow: a(f"s_waitcnt vmcnt({ow-1})")
                a(f"buffer_load_dwordx4 {vr(216+4*e)}, v15, {srd(srdWt)}, s{sT+6} offen offset:{(e%4)*1280} {o['wpol']}")
            a("s_waitcnt vmcnt(0)")
            self.transpose(216, 48 + 32 * kb)
        for kb in range(o["wopre"]): woblock(kb)
        if o["noq"]:
            a("s_barrier")
            a("s_branch L_noq")
        a("v_lshrrev_b32 v8, 3, v0")
        a("v_lshl_add_u32 v8, v8, 10, v1")
        a(f"s_and_b32 s{sT+6}, s{sR}, 3")
        a(f"s_mul_i32 s{sT+6}, s{sT+6}, 3")
        a(f"s_mul_i32 s{sT+7}, s{sX}, 24")
        a(f"s_add_u32 s{sT+6}, s{sT+6}, s{sT+7}")
        a(f"s_lshl_b32 s{sT+6}, s{sT+6}, 11")
        self.swapbits(sT + 7, sB, sT + 8)
        a(f"s_lshl_b32 s{sT+7}, s{sT+7}, 7")
        a(f"s_add_u32 s{sT+6}, s{sT+6}, s{sT+7}")
        a(f"s_add_u32 s{sT+10}, s{sT+6}, {QBUF}")
        a(f"s_add_u32 s{sT+11}, s{sT+6}, {QBUF + 12*2048}")
        a("v_lshrrev_b32 v9, 4, v0")
        a("v_lshl_add_u32 v9, v9, 7, v1")
        a("v_and_b32 v10, 8, v0")
        a("v_add_u32 v9, v9, v10")
        a("s_mov_b32 exec_hi, 0xffff")
        self.poll("L_pq", [f"buffer_load_dwordx4 {vr(16+4*rb)}, v8, {srd(srdWS)}, s{sT+10+rb} offen sc1" for rb in range(2)],
                  range(16, 24), 4)
        for j in range(4): a(f"v_add_f32 v{16+j}, v{16+j}, v{20+j}")
        a("v_cvt_pk_bf16_f32 v16, v16, v17")
        a("v_cvt_pk_bf16_f32 v17, v18, v19")
        a(f"ds_write_b64 v9, v[16:17] offset:{L_Q}")
        a("s_mov_b64 exec, -1")
        a("s_waitcnt lgkmcnt(0)")
        self.stamp(3)
        a("s_barrier")
        a(f"s_mov_b32 s{sT+6}, {TBUF}")
        ld = f"buffer_load_dwordx4 v[16:19], v3, {srd(srdWS)}, s{sT+6} offen"
        self.poll("L_pt", [ld + " sc1"], range(16, 20), 4, first=[ld] if o["plainfirst"] else None)
        a("L_noq:")
        for k in range(4): a(f"v_xor_b32 v{16+k}, s{sT+9}, v{16+k}")
        a("v_or3_b32 v16, v16, v17, v18")
        a("v_or_b32 v16, v16, v19")
        a("v_cmp_ne_u32 vcc, 0, v16")
        a(f"s_lshl_b32 s{sT+6}, s{sX}, 3")
        a(f"s_lshr_b64 s[{sT+12}:{sT+13}], vcc, s{sT+6}")
        a(f"s_and_b32 s{sT+12}, s{sT+12}, 0xff")
        a(f"s_cselect_b32 s{sLOC}, 0, 1")
        a(f"v_mov_b32 v10, s{sLOC}")
        a("v_mov_b32 v11, 0")
        a(f"ds_write_b32 v11, v10 offset:{L_SM+32}")
        a("s_waitcnt lgkmcnt(0)")
        a("s_barrier")
        self.read_frags(176)
        a("s_waitcnt lgkmcnt(0)")
        a("s_barrier")
        for kb in range(o["wopre"], 4): woblock(kb)
        a(f"s_lshl_b32 s{sT+6}, s{sT+3}, 12")
        a(f"s_mul_i32 s{sT+7}, s{sT+3}, 20480")
        a(f"s_lshl_b32 s{sT+8}, s{sT+4}, 11")
        a(f"s_add_u32 s{sT+7}, s{sT+7}, s{sT+8}")
        a(f"s_add_u32 s{sT+7}, s{sT+7}, {YBUF}")
        self.stamp(6)
        a("s_barrier")
        if o["notail"]: a("s_branch L_done")
        a(f"s_cmp_ge_u32 s{sR}, 30")
        a("s_cbranch_scc1 L_h0done")
        self.poll("L_po", [f"buffer_load_dwordx4 {vr(16+4*kb)}, v3, {srd(srdWS)}, s{sT+6} offen offset:{OBUF+1024*kb} {o['pollld']}" for kb in range(4)],
                  range(16, 32), 4)
        self.stamp(8)
        for m in range(8):
            for kb in range(4):
                c = "0" if kb == 0 else vr(216 + 4 * m)
                a(f"v_mfma_f32_16x16x32_bf16 {vr(216+4*m)}, {vr(16+4*kb)}, {vr(48+32*kb+4*m)}, {c}")
            if m >= 2: self.combineB([216 + 4 * (m - 2)], [32 + m - 2])
            if m == 5: a(f"buffer_store_dwordx4 v[32:35], v3, {srd(srdWS)}, s{sT+7} offen sc1")
        self.combineB([216 + 24, 216 + 28], [38, 39])
        a(f"buffer_store_dwordx4 v[36:39], v3, {srd(srdWS)}, s{sT+7} offen offset:1024 sc1")
        self.stamp(9)
        a("L_h0done:")
        a(f"s_cmp_lg_u32 s{sX}, 0")
        a("s_cbranch_scc1 L_done")
        if o["b5b"]: a("s_barrier")
        a(f"s_mov_b32 s{sT+10}, 8")
        a("s_branch L_grp0")

        a("L_h123:")
        wk0 = o["wk0"]
        a(f"s_sub_u32 s{sT+3}, s{sR}, {wk0}")
        a(f"s_cmp_lt_u32 s{sT+3}, 24")
        a(f"s_cselect_b32 s{sT+4}, 1, 0")
        a(f"s_cmp_eq_u32 s{sX}, 0")
        a(f"s_cselect_b32 s{sT+4}, s{sT+4}, 0")
        a(f"s_sub_u32 s{sT+5}, s{sW}, 5")
        hw = o["hw"]
        def stage(tag, ptr, nbytes, rstride, base_expr, blkstep, first, last):
            a(f"s_cmp_eq_u32 s{sT+4}, 0")
            a(f"s_cbranch_scc1 {tag}_e")
            self.mksrd(srdWt, ptr, nbytes)
            a(f"v_mul_u32_u24 v7, {rstride}, v2")
            a("v_add_u32 v7, v7, v1")
            a(f"s_mul_i32 s{sT+6}, s{sT+3}, {base_expr}")
            a(f"s_add_u32 s{sT+7}, s{sT+5}, {first}")
            a(f"{tag}:")
            a(f"s_mul_i32 s{sT+8}, s{sT+7}, {blkstep}")
            a(f"s_add_u32 s{sT+8}, s{sT+8}, s{sT+6}")
            for e in range(8):
                if e >= hw: a(f"s_waitcnt vmcnt({hw-1})")
                a(f"buffer_load_dwordx4 {vr(64+4*e)}, v7, {srd(srdWt)}, s{sT+8} offen {o['wpol']}")
                if e < 7: a(f"s_add_u32 s{sT+8}, s{sT+8}, {8*rstride}")
            a(f"s_lshl_b32 s{sT+8}, s{sT+7}, 13")
            a(f"s_add_u32 s{sT+8}, s{sT+8}, {L_W}")
            a(f"v_add_u32 v8, s{sT+8}, v3")
            a("s_waitcnt vmcnt(0) lgkmcnt(0)")
            self.transpose(64, 128)
            for m in range(8): a(f"ds_write_b128 v8, {vr(128+4*m)} offset:{1024*m}")
            a(f"s_add_u32 s{sT+7}, s{sT+7}, 3")
            a(f"s_cmp_lt_u32 s{sT+7}, {last}")
            a(f"s_cbranch_scc1 {tag}")
            a("s_waitcnt lgkmcnt(0)")
            a(f"{tag}_e:")
        sp = o["w1split"]
        if sp and not o["skip1"]: stage("L_st0", 16, 1966080, 3072, 128, 64 * 3072, 0, sp)
        a("s_barrier")
        if not o["skip1"]: stage("L_st1", 16, 1966080, 3072, 128, 64 * 3072, sp, 10)
        self.stamp(4)
        a("s_barrier")
        a("v_mov_b32 v13, 0")
        a(f"ds_read_b32 v16, v13 offset:{L_SM+32}")
        self.read_frags(176)
        a("s_waitcnt lgkmcnt(0)")
        a(f"v_readfirstlane_b32 s{sLOC}, v16")
        a("s_barrier")
        if not o["skip2"]: stage("L_st2", 18, 1966080, 1280, 64 * 1280, 128, 0, 10)
        a("v_bfe_u32 v8, v0, 2, 1")
        a("v_lshl_add_u32 v8, v8, 4, v6")
        a("v_and_b32 v9, 3, v0")
        a("v_lshlrev_b32 v9, 2, v9")
        a("v_lshl_add_u32 v8, v8, 4, v9")
        a(f"s_lshl_b32 s{sT+6}, s{sT+5}, 10")
        a(f"s_add_u32 s{sT+6}, s{sT+6}, {L_OP}")
        a(f"v_add_u32 v8, s{sT+6}, v8")
        a("v_add_u32 v9, 640, v8")
        a("v_and_b32 v10, 3, v6")
        a("v_lshlrev_b32 v10, 8, v10")
        a("v_lshrrev_b32 v11, 5, v0")
        a("v_lshl_add_u32 v10, v11, 7, v10")
        a("v_and_b32 v11, 7, v0")
        a("v_lshl_add_u32 v10, v11, 1, v10")
        a(f"s_mul_i32 s{sT+6}, s{sH}, 3")
        a(f"s_add_u32 s{sT+6}, s{sT+6}, s{sT+5}")
        a(f"s_lshl_b32 s{sT+6}, s{sT+6}, 10")
        a(f"s_lshl4_add_u32 s{sT+6}, s{sB}, s{sT+6}")
        self.stamp(6)
        a("s_barrier")
        if o["notail"]: a("s_branch L_done")
        a("ds_read2st64_b32 v[16:17], v8 offset0:0 offset1:12")
        a("ds_read2st64_b32 v[18:19], v9 offset0:0 offset1:12")
        a("ds_read2st64_b32 v[20:21], v8 offset0:24 offset1:36")
        a("ds_read2st64_b32 v[22:23], v9 offset0:24 offset1:36")
        a("s_waitcnt lgkmcnt(2)")
        a("v_add_f32 v16, v16, v17"); a("v_add_f32 v18, v18, v19")
        a("s_waitcnt lgkmcnt(0)")
        a("v_add_f32 v20, v20, v21"); a("v_add_f32 v22, v22, v23")
        a("v_add_f32 v16, v16, v18"); a("v_add_f32 v20, v20, v22")
        a("v_add_f32 v16, v16, v20")
        a("v_mov_b32_dpp v17, v16 quad_perm:[1,0,3,2] row_mask:0xf bank_mask:0xf")
        a("v_cvt_pk_bf16_f32 v16, v16, v17")
        a("s_mov_b32 exec_lo, 0x55555555")
        a("s_mov_b32 exec_hi, 0x55555555")
        self.pub("L_pubo", [f"buffer_store_dword v16, v10, {srd(srdWS)}, s{sT+6} offen offset:{OBUF}"])
        a("s_mov_b64 exec, -1")
        self.stamp(8)
        a(f"s_cmp_lg_u32 s{sX}, 0")
        a("s_cbranch_scc1 L_done")
        a(f"s_cmp_eq_u32 s{sW}, 7")
        a(f"s_cselect_b32 s{sT+10}, 4, 7")

        a("L_grp0:")
        a(f"s_sub_u32 s{sT+11}, s{sR}, {wk0}")
        a(f"s_lshr_b32 s{sT+1}, s{sW}, 2")
        a(f"s_and_b32 s{sT+2}, s{sW}, 3")
        a(f"s_lshl_b32 s{sT+3}, s{sT+1}, 1")
        a(f"s_xor_b32 s{sT+2}, s{sT+2}, s{sT+3}")
        a(f"s_mul_i32 s{sT+16}, s{sT+2}, 3")
        a(f"s_cmp_eq_u32 s{sT+2}, 3")
        a(f"s_cselect_b32 s{sT+16}, 8, s{sT+16}")
        a(f"s_cmp_lt_u32 s{sT+2}, 2")
        a(f"s_cselect_b32 s{sT+17}, 1, 0")
        a(f"s_lshl_b32 s{sT+3}, s{sT+16}, 13")
        a(f"s_lshl_b32 s{sT+4}, s{sT+1}, 12")
        a(f"s_add_u32 s{sT+3}, s{sT+3}, s{sT+4}")
        a(f"s_add_u32 s{sT+3}, s{sT+3}, {L_W}")
        a(f"v_add_u32 v4, s{sT+3}, v3")
        for k in range(2):
            for u in range(4): a(f"ds_read_b128 {vr(216+16*k+4*u)}, v4 offset:{8192*k+1024*u}")
        a(f"s_cmp_eq_u32 s{sT+17}, 0")
        a("s_cbranch_scc1 L_no3a")
        for u in range(4): a(f"ds_read_b128 {vr(160+4*u)}, v4 offset:{16384+1024*u}")
        a("L_no3a:")
        a(f"s_mul_i32 s{sT+2}, s{sT+11}, 20480")
        a(f"s_lshl_b32 s{sT+16}, s{sT+16}, 11")
        a(f"s_add_u32 s{sT+16}, s{sT+16}, s{sT+2}")
        a(f"s_lshl_b32 s{sT+1}, s{sT+1}, 10")
        a(f"s_add_u32 s{sT+16}, s{sT+16}, s{sT+1}")
        a(f"s_add_u32 s{sT+16}, s{sT+16}, {FBUF}")
        self.mksrd(srdOUT, 20, 10240)
        a("v_lshrrev_b32 v6, 3, v0")
        a("v_mul_u32_u24 v15, 20480, v6")
        a("v_add_u32 v15, v15, v1")
        a(f"s_mul_i32 s{sT+9}, s{sW}, 2560")
        a(f"s_add_u32 s{sT+9}, s{sT+9}, {HBUF}")
        a("v_lshlrev_b32 v8, 3, v0")
        a("v_bfe_u32 v10, v0, 2, 1")
        a("v_bfe_u32 v11, v0, 3, 1")
        a("v_lshl_add_u32 v10, v10, 1, v11")
        a(f"v_xor_b32 v11, s{sW}, v10")
        a("v_lshlrev_b32 v11, 5, v11")
        a("v_lshl_add_u32 v10, v10, 8, v11")
        a("v_and_b32 v11, 3, v0")
        a("v_lshl_add_u32 v10, v11, 3, v10")
        a("v_lshrrev_b32 v11, 4, v0")
        a("v_lshl_add_u32 v10, v11, 10, v10")
        a("v_bfe_u32 v11, v0, 3, 1")
        a("v_bfe_u32 v16, v0, 4, 1")
        a("v_lshl_add_u32 v11, v11, 1, v16")
        a(f"v_xor_b32 v16, s{sW}, v11")
        a("v_lshlrev_b32 v16, 5, v16")
        a("v_lshl_add_u32 v11, v11, 8, v16")
        a("v_and_b32 v16, 7, v0")
        a("v_lshl_add_u32 v11, v16, 2, v11")
        a("v_lshrrev_b32 v16, 5, v0")
        a("v_lshl_add_u32 v11, v16, 10, v11")
        a("v_lshrrev_b32 v5, 5, v0")
        a("v_bfe_u32 v16, v0, 3, 1")
        a("v_lshl_add_u32 v5, v5, 1, v16")
        a("v_and_b32 v16, 7, v0")
        a(f"v_mul_u32_u24 v7, {SRS}, v16")
        a("v_lshl_add_u32 v7, v2, 4, v7")
        a("v_xor_b32 v16, v16, v5")
        a("v_lshlrev_b32 v16, 5, v16")
        a("v_lshl_add_u32 v5, v5, 8, v16")
        a("v_and_b32 v16, 16, v0")
        a("v_add_u32 v5, v5, v16")
        a("v_bfe_u32 v16, v0, 4, 1")
        a("v_lshrrev_b32 v17, 5, v0")
        a("v_lshlrev_b32 v16, 2, v16")
        a("v_lshl_add_u32 v16, v17, 1, v16")
        a("v_bfe_u32 v17, v0, 3, 1")
        a("v_add_u32 v16, v16, v17")
        a(f"v_mul_u32_u24 v16, {SRS}, v16")
        a("v_lshrrev_b32 v17, 3, v1")
        a(f"s_lshl_b32 s{sT+1}, s{sW}, 4")
        a(f"v_add3_u32 v16, v16, v17, s{sT+1}")
        a(f"s_mul_i32 s{sT}, s{sR}, 5")
        a(f"s_add_u32 s{sT}, s{sT}, s{sT+10}")
        a(f"s_lshr_b32 s{sT+1}, s{sT}, 3")
        a(f"s_and_b32 s{sT+2}, s{sT}, 7")
        self.swapbits(sT + 3, sT + 2, sT + 4)
        a(f"s_lshl_b32 s{sT+12}, s{sT}, 7")
        a(f"s_add_u32 s{sT+12}, s{sT+12}, {YBUF}")
        a(f"s_add_u32 s{sT+13}, s{sT+12}, {8*20480}")
        a(f"s_add_u32 s{sT+14}, s{sT+12}, {16*20480}")
        a(f"s_mul_i32 s{sT+4}, s{sT+3}, 1280")
        a(f"s_lshr_b32 s{sT+5}, s{sT+1}, 1")
        a(f"s_lshl_b32 s{sT+5}, s{sT+5}, 7")
        a(f"s_add_u32 s{sT+4}, s{sT+4}, s{sT+5}")
        a(f"s_and_b32 s{sT+5}, s{sT+1}, 1")
        a(f"s_lshl3_add_u32 s{sT+4}, s{sT+5}, s{sT+4}")
        a("v_lshrrev_b32 v9, 4, v0")
        a("v_lshl_add_u32 v12, v9, 1, v1")
        a(f"v_add_u32 v12, s{sT+4}, v12")
        a("v_lshlrev_b32 v9, 5, v9")
        a("v_lshrrev_b32 v17, 2, v1")
        a("v_add_u32 v9, v9, v17")
        a(f"s_mul_i32 s{sT+15}, s{sT+3}, 2560")
        a(f"s_lshl_b32 s{sT+5}, s{sT+1}, 7")
        a(f"s_add_u32 s{sT+15}, s{sT+15}, s{sT+5}")
        a(f"s_add_u32 s{sT+15}, s{sT+15}, {HBUF}")
        a(f"s_cmp_ge_u32 s{sT+10}, 5")
        a("s_cbranch_scc1 L_nored0")
        a(f"buffer_load_ushort v13, v12, {srd(srdX)}, 0 offen")
        if o["b5b"]: a("s_barrier")
        self.poll("L_py", [f"buffer_load_dwordx4 {vr(64+4*i)}, v15, {srd(srdWS)}, s{sT+12+i} offen sc1" for i in range(3)],
                  range(64, 76), 4)
        self.stamp(10)
        self.reduce24(64)
        a("v_cvt_pk_bf16_f32 v64, v64, v64")
        a("v_lshlrev_b32 v13, 16, v13")
        a("v_and_b32 v64, 0xffff0000, v64")
        a("v_add_f32 v14, v13, v64")
        a("v_cvt_pk_bf16_f32 v14, v14, v14")
        a("s_mov_b32 exec_lo, 0x00ff00ff")
        a("s_mov_b32 exec_hi, 0x00ff00ff")
        a("v_and_b32 v14, 0xffff0000, v14")
        self.pub("L_pubh", [f"buffer_store_dword v14, v9, {srd(srdWS)}, s{sT+15} offen"])
        a("s_mov_b64 exec, -1")
        for i in range(3): a(f"s_add_u32 s{sT+12+i}, s{sT+12+i}, {FBUF-YBUF}")
        a("s_branch L_nored1")
        a("L_nored0:")
        if o["b5b"]:
            a(f"s_cmp_eq_u32 s{sT+10}, 8")
            a("s_cbranch_scc1 L_nored1")
            a("s_barrier")
        a("L_nored1:")
        a(f"s_cmp_ge_u32 s{sT+11}, 24")
        a("s_cbranch_scc1 L_noffn")
        pl = o["pollld"]
        self.poll("L_ph", [f"buffer_load_dwordx4 v[40:43], v3, {srd(srdWS)}, s{sT+9} offen {pl}",
                           f"buffer_load_dwordx4 v[44:47], v3, {srd(srdWS)}, s{sT+9} offen offset:1024 {pl}",
                           f"buffer_load_dwordx2 v[48:49], v8, {srd(srdWS)}, s{sT+9} offen offset:2048 {pl}"],
                  range(40, 50), 4)
        self.stamp(11)
        self.layernorm()
        if o["fine"]: self.stamp(1)
        a(f"ds_write_b64 v10, v[32:33] offset:{L_XN}")
        a(f"ds_write_b64 v10, v[34:35] offset:{L_XN+4096}")
        a(f"ds_write_b32 v11, v36 offset:{L_XN+8192}")
        a("s_waitcnt lgkmcnt(0)")
        a("s_barrier")
        if o["fine"]: self.stamp(2)
        for kb in range(10): a(f"ds_read_b128 {vr(76+4*kb)}, v5 offset:{L_XN+1024*kb}")
        for kb in range(10):
            a(f"s_waitcnt lgkmcnt({9-kb})")
            c = "0" if kb == 0 else "v[116:119]"
            a(f"v_mfma_f32_16x16x32_bf16 v[116:119], {vr(76+4*kb)}, {vr(176+4*kb)}, {c}")
        if o["fine"]: self.stamp(3)
        self.combineB([116], [120])
        a("v_cvt_pk_bf16_f32 v120, v120, v120")
        a("v_and_b32 v120, 0xffff0000, v120")
        a(f"v_mul_f32 v121, {hx(f2u(-1.4426950408889634))}, v120")
        a("v_exp_f32 v121, v121")
        a("v_add_f32 v121, 1.0, v121")
        a("v_rcp_f32 v121, v121")
        a("v_mul_f32 v120, v120, v121")
        a("v_cvt_pk_bf16_f32 v120, v120, v120")
        a(f"ds_write_b16 v16, v120 offset:{L_SA}")
        a("s_waitcnt lgkmcnt(0)")
        if o["fine"]: self.stamp(4)
        a("s_barrier")
        if o["fine"]: self.stamp(5)
        a(f"ds_read_b128 v[120:123], v7 offset:{L_SA}")
        a(f"s_cmp_eq_u32 s{sT+17}, 0")
        a("s_waitcnt lgkmcnt(0)")
        for k in range(8):
            a(f"v_mfma_f32_16x16x32_bf16 {vr(76+4*k)}, v[120:123], {vr(216+4*k)}, 0")
        a("s_cbranch_scc1 L_no3b")
        for k in range(4):
            a(f"v_mfma_f32_16x16x32_bf16 {vr(124+4*k)}, v[120:123], {vr(160+4*k)}, 0")
        a("L_no3b:")
        self.combineB([76 + 4 * k for k in range(4)], [108 + k for k in range(4)])
        self.pub("L_pubf", [f"buffer_store_dwordx4 v[108:111], v3, {srd(srdWS)}, s{sT+16} offen"])
        self.combineB([92 + 4 * k for k in range(4)], [112 + k for k in range(4)])
        self.pub("L_pubg", [f"buffer_store_dwordx4 v[112:115], v3, {srd(srdWS)}, s{sT+16} offen offset:2048"])
        a(f"s_cmp_eq_u32 s{sT+17}, 0")
        a("s_cbranch_scc1 L_no3c")
        a(f"s_add_u32 s{sT+16}, s{sT+16}, 4096")
        self.combineB([124 + 4 * k for k in range(4)], [140 + k for k in range(4)])
        self.pub("L_pubi", [f"buffer_store_dwordx4 v[140:143], v3, {srd(srdWS)}, s{sT+16} offen"])
        a("L_no3c:")
        if o["fine"]: self.stamp(15)
        self.stamp(12)
        a("L_noffn:")
        a(f"s_cmp_ge_u32 s{sT+10}, 5")
        a("s_cbranch_scc1 L_done")
        self.poll("L_pf", [f"buffer_load_dwordx4 {vr(64+4*i)}, v15, {srd(srdWS)}, s{sT+12+i} offen {pl}" for i in range(3)],
                  range(64, 76), 4)
        self.stamp(13)
        self.reduce24(64)
        a("v_cvt_pk_bf16_f32 v64, v64, v64")
        a("v_and_b32 v64, 0xffff0000, v64")
        a("v_add_f32 v14, v14, v64")
        a("v_cvt_pk_bf16_f32 v14, v14, v14")
        a("s_mov_b32 exec_lo, 0x00ff00ff")
        a("s_mov_b32 exec_hi, 0x00ff00ff")
        a(f"buffer_store_short v14, v12, {srd(srdOUT)}, 0 offen")
        a("s_mov_b64 exec, -1")
        a("L_done:")
        if o["hold"]:
            a("L_hold:")
            a(f"s_memrealtime s[{sT}:{sT+1}]")
            a("s_waitcnt lgkmcnt(0)")
            a(f"s_sub_u32 s{sT}, s{sT}, s{sST}")
            a(f"s_cmp_lt_u32 s{sT}, {int(o['hold']*100)}")
            a("s_cbranch_scc1 L_hold")
        if o["stamps"]:
            a("s_waitcnt vmcnt(0)")
            self.stamp(14)
            a(f"s_lshl_b32 s{sT}, s2, 3")
            a(f"s_add_u32 s{sT}, s{sT}, s{sW}")
            a(f"s_lshl_b32 s{sT}, s{sT}, 6")
            a(f"s_add_u32 s{sT}, s{sT}, {STAMP}")
            for k in range(16): a(f"v_mov_b32 v{16+k}, s{sST+k}")
            a("v_mov_b32 v4, 0")
            a("s_mov_b64 exec, 1")
            for k in range(4): a(f"buffer_store_dwordx4 {vr(16+4*k)}, v4, {srd(srdWS)}, s{sT} offen offset:{16*k}")
        a("L_end:")
        a("s_endpgm")
        body, nn = fix_hazards(self.L)
        head = open("cdna_kernels/" + NAME + ".s.ref").read().split("; Override launch")[0] if False else ""
        out = [f"; @launch grid=(256,1,1) block=(512,1,1) lds={LDS_BYTES}",
               '.amdgcn_target "amdgcn-amd-amdhsa--gfx950"', ".text", f".globl {NAME}_kernel", ".p2align 8",
               f".type {NAME}_kernel,@function"]
        out += [s if s.endswith(":") else "    " + s for s in body]
        out += ['.section .rodata,"a"', ".p2align 6", f".amdhsa_kernel {NAME}_kernel",
                "  .amdhsa_next_free_vgpr 256", "  .amdhsa_next_free_sgpr 102", "  .amdhsa_accum_offset 256",
                "  .amdhsa_group_segment_fixed_size 0", "  .amdhsa_kernarg_size 88", "  .amdhsa_user_sgpr_count 2",
                "  .amdhsa_user_sgpr_kernarg_segment_ptr 1", "  .amdhsa_system_sgpr_workgroup_id_x 1",
                "  .amdhsa_float_denorm_mode_32 3", ".end_amdhsa_kernel"]
        return "\n".join(out) + "\n"

def gen(**o): return G(**o).gen()

if __name__ == "__main__":
    kw = {}
    for s in sys.argv[2:]:
        k, v = s.split("=")
        try: v = eval(v)
        except Exception: pass
        kw[k] = v
    open(sys.argv[1], "w").write(gen(**kw))
```

```python
import re

TRANS = ("v_exp_f32", "v_log_f32", "v_rcp_f32", "v_rsq_f32", "v_sqrt_f32", "v_sin_f32", "v_cos_f32")

def regs_of(tok):
    tok = tok.strip()
    tok = tok.lstrip("-")
    if tok.startswith("abs(") or tok.startswith("|"):
        tok = tok.replace("abs(", "").replace(")", "").replace("|", "")
    m = re.fullmatch(r"([vs])(\d+)", tok)
    if m: return {(m.group(1), int(m.group(2)))}
    m = re.fullmatch(r"([vs])\[(\d+):(\d+)\]", tok)
    if m: return {(m.group(1), i) for i in range(int(m.group(2)), int(m.group(3)) + 1)}
    if tok == "vcc": return {("s", "vcc")}
    if tok == "exec": return {("s", "exec")}
    return set()

class Ins:
    def __init__(self, text):
        self.text = text
        t = text.split(";")[0].strip()
        self.label = None; self.op = None
        self.w = set(); self.r = set(); self.kind = "other"; self.srcc = set(); self.srcab = set()
        self.target = None; self.dpp = False; self.sdata = set()
        if t.endswith(":"):
            self.label = t[:-1]; self.kind = "label"; return
        if not t or t.startswith("."):
            self.kind = "dir"; return
        parts = t.split(None, 1)
        op = self.op = parts[0]
        rest = parts[1] if len(parts) > 1 else ""
        ops = [o.strip() for o in re.split(r",(?![^\[]*\])", rest)] if rest else []
        mods = ""
        if ops:
            sp = ops[-1].split(None, 1)
            ops[-1] = sp[0]; mods = sp[1] if len(sp) > 1 else ""
        self.mods = mods
        R = [regs_of(o) for o in ops]
        U = lambda xs: set().union(*xs) if xs else set()
        if op.startswith("v_mfma"):
            self.kind = "mfma"; self.w = R[0]; self.srcab = R[1] | R[2]; self.srcc = R[3]; self.r = U(R[1:])
        elif op.startswith("v_dot"):
            self.kind = "dot"; self.w = R[0]; self.srcab = R[1] | R[2]
            self.srcc = R[3] if len(R) > 3 else R[0]; self.r = self.srcab | self.srcc
        elif op.startswith("v_permlane"):
            self.kind = "valu"; self.w = R[0] | R[1]; self.r = R[0] | R[1]
        elif op.startswith("v_cmp"):
            self.kind = "valu"; self.w = R[0]; self.r = U(R[1:])
        elif op.startswith("v_"):
            self.kind = "valu"; self.w = R[0]; self.r = U(R[1:])
            if op.startswith(("v_fmac", "v_mac")) or "_dpp" in op: self.r |= R[0]
            if op.startswith("v_cndmask") and len(R) == 3: self.r |= {("s", "vcc")}
            self.dpp = "_dpp" in op
            self.dppsrc = R[1] if self.dpp else set()
        elif op.startswith(("buffer_load", "global_load")):
            self.kind = "vmem"
            if " lds" in " " + mods: self.r = U(R)
            else: self.w = R[0]; self.r = U(R[1:])
        elif op.startswith(("buffer_store", "buffer_atomic")):
            self.kind = "vmem"; self.r = U(R)
            if "x3" in op or "x4" in op: self.sdata = R[0]
            if op.startswith("buffer_atomic") and "sc0" in mods: self.w = R[0]
        elif op.startswith("ds_read"):
            self.kind = "ds"; self.w = R[0]; self.r = U(R[1:])
        elif op.startswith("ds_"):
            self.kind = "ds"; self.r = U(R)
        elif op.startswith(("s_branch", "s_cbranch")):
            self.kind = "branch"; self.target = ops[0]
        elif op == "s_nop":
            self.kind = "nop"; self.n = int(ops[0]) + 1
        elif op == "s_endpgm":
            self.kind = "end"
        elif op.startswith("s_"):
            self.kind = "salu"
            if R and not op.startswith(("s_cmp", "s_waitcnt", "s_barrier", "s_sleep", "s_setprio", "s_bitcmp")): self.w = R[0]; self.r = U(R[1:])
            else: self.r = U(R)
    def states(self):
        if self.kind in ("label", "dir"): return 0
        if self.kind == "nop": return self.n
        return 1

def need(p, c):
    n = 0
    vw = {x for x in p.w if x[0] == "v"}; sw = {x for x in p.w if x[0] == "s"}
    isvalu = lambda i: i.kind in ("valu", "dot")
    if p.kind == "valu":
        if c.kind == "valu" and c.dpp and vw & c.r: n = max(n, 2)
        if c.op and c.op.startswith("v_permlane") and vw & c.r: n = max(n, 2)
        if c.op and c.op.startswith(("v_readlane", "v_readfirstlane")) and vw & c.r: n = max(n, 1)
        if c.kind == "mfma" and vw & c.r: n = max(n, 2)
        if p.op.startswith(TRANS) and isvalu(c) and not c.op.startswith(TRANS) and vw & c.r: n = max(n, 1)
        if p.op.startswith(TRANS) and c.kind == "mfma" and vw & c.r: n = max(n, 2)
        if sw:
            if isvalu(c) and sw & c.r: n = max(n, 2)
            if c.op and c.op.startswith(("v_readlane", "v_writelane")) and sw & c.r: n = max(n, 4)
            if c.kind == "vmem" and sw & c.r: n = max(n, 5)
    if p.kind == "dot":
        if c.kind == "dot" and c.op == p.op:
            if vw & c.srcab: n = max(n, 3)
        elif (isvalu(c) or c.kind in ("mfma", "vmem", "ds")) and vw & (c.r | c.w): n = max(n, 3)
    if p.kind == "mfma":
        assert "16x16x32" in p.op
        if c.kind == "mfma":
            if vw & c.srcab: n = max(n, 8)
            if vw & c.srcc and vw != c.srcc: n = max(n, 6)
            if vw & c.w and vw != c.srcc: n = max(n, 6)
        elif isvalu(c) or c.kind in ("vmem", "ds"):
            if vw & (c.r | c.w): n = max(n, 8)
            if isvalu(c) and p.srcc & c.w: n = max(n, 3)
    if p.kind == "vmem" and p.sdata:
        if isvalu(c) and p.sdata & c.w: n = max(n, 2)
        elif p.sdata & c.w: n = max(n, 1)
    return n

def fix_hazards(lines):
    ins = [Ins(t) for t in lines]
    total = 0
    for _ in range(10):
        labels = {i.label: i for i in ins if i.label}
        preds = {}
        for i in ins:
            if i.kind == "branch": preds.setdefault(id(labels[i.target]), []).append(i)
        out = []; pos_of = {id(x): k for k, x in enumerate(ins)}
        extra = {}
        for k, c in enumerate(ins):
            if c.kind in ("label", "dir", "nop", "branch", "end", "salu", "other"): continue
            worst = 0
            stack = [(k, 0)]; seen = set()
            while stack:
                pos, dist = stack.pop()
                if pos != k: dist += extra.get(pos, 0)
                ps = []
                if pos > 0:
                    q = ins[pos - 1]
                    if not (q.kind == "end" or q.op == "s_branch"): ps.append(pos - 1)
                if ins[pos].kind == "label": ps += [pos_of[id(b)] for b in preds.get(id(ins[pos]), [])]
                for q in ps:
                    if (q, dist) in seen: continue
                    seen.add((q, dist))
                    p = ins[q]
                    if p.op:
                        nd = need(p, c)
                        if nd > dist: worst = max(worst, nd - dist)
                    d2 = dist + p.states()
                    if d2 < 12: stack.append((q, d2))
            if worst: extra[k] = worst
        if not extra: break
        for k, c in enumerate(ins):
            if k in extra: out.append(Ins(f"s_nop {extra[k]-1}")); total += extra[k]
            out.append(c)
        ins = out
    else:
        raise RuntimeError("hazard pass did not converge")
    return [i.text for i in ins], total
```

```python
import struct, sys
from asmlib import fix_hazards

NAME = "sequential_preLN__sliding_block_cached__dense_activation_silu__decode"
f2u = lambda x: struct.unpack("<I", struct.pack("<f", x))[0]
hx = lambda x: "0x%08x" % (x & 0xffffffff)

OBUF = 0
PSTR = 20480 + 128
YBUF = OBUF + 96 * 1024
HBUF = YBUF + 24 * PSTR
FBUF = HBUF + 8 * 2560
KBUF = FBUF + 24 * PSTR
GBUF = KBUF + 3 * 1024
TBUF = GBUF + 1024
QBUF = TBUF + 1024
CLR_END = QBUF + 8 * 24 * 2048
assert CLR_END <= 256 * 6144
WS_USED = CLR_END
STAMP = 2 << 20
XRS = 1296
L_XN = 0
L_Q = L_XN + 8 * XRS
L_SM = L_Q + 384
L_OP = L_SM + 64
SRS = 144
L_SA = L_OP + 4 * 3072
L_WX = L_SA + 8 * SRS
L_W = L_WX + 16384
LDS_BYTES = L_W + 81920

sX, sR, sH, sB, sW = 26, 27, 28, 29, 30
srdK, srdV, srdX, srdWt, srdWS, srdDBG, srdOUT = 32, 36, 40, 44, 48, 52, 56
sPlo, sPhi, sLOC, sPat, sOff, sCnt = 80, 81, 82, 83, 84, 85
sLvl, sBase, sAlt = 3, 31, 2
sGi = 81
sT = 60
sM = 4
sST = 86
SPIN = 100000

def srd(n): return f"s[{n}:{n+3}]"
def vr(a, n=4): return f"v[{a}:{a+n-1}]" if n > 1 else f"v{a}"

DEF = dict(W=4, Wk=6, W0=3, rot=11, burst3=6, burst4=3, ring=48, stamps=False, local=True, pollld="sc1",
           hw=4, wk0=8, kvpol="nt", wpol="nt", w1split=3, fine=False, fine0=False, notail=False, hold=0,
           wolate=32, stpol="", prio=3, duty=[(6, 2, 12, 8), (6, 6, 12, 12)], dyn=[(14, 18, 2)] * 3,
           lvl0=(1, 0, 2, 1), lvl1=(1, 1, 2, 2), cp3=16, dstart=2, d0=3, n1=12, align=True, wbl2=0, b5b=True, csleep=0, qsleep=0, lite=False, mpoll=True, predirty=False, preread="f", prepol="", pd={}, b5c=True, isleep=0, Wl=(4, 5, 6, 7), Wend=None, endfrom=168, step=(1, 1, 1), glob=None, woafter=True, ntrig=4, wosleep=2, woearly=0, wothr=0, wothr2=24, rot3=None, gwait=False, rotmem=False, rot4=(4, 1, 4, 0), krows=8, skew=None, wpart=None, gmul=1)

class G:
    def __init__(self, **o):
        self.o = dict(DEF); assert set(o) <= set(DEF), set(o) - set(DEF)
        self.o.update(o)
        self.L = []; self.cold = []; self.nlab = 0

    def a(self, s): self.L.append(s)

    def stamp(self, k):
        if self.o["stamps"] and (not self.o["lite"] or k in (7, 14)):
            self.a(f"s_memrealtime s[{sT+18}:{sT+19}]")
            self.a("s_waitcnt lgkmcnt(0)")
            self.a(f"s_mov_b32 s{sST+k}, s{sT+18}")

    def stamp_init(self):
        if self.o["stamps"] and not self.o["lite"]:
            self.a(f"s_mov_b32 s{sST+1}, 0")
            for k in range(2, 16, 2): self.a(f"s_mov_b64 s[{sST+k}:{sST+k+1}], 0")

    def mksrd(self, d, base, nbytes, off=None):
        a = self.a
        if off is None:
            a(f"s_mov_b64 s[{d}:{d+1}], s[{base}:{base+1}]")
        else:
            a(f"s_add_u32 s{d}, s{base}, {off}"); a(f"s_addc_u32 s{d+1}, s{base+1}, 0")
        a(f"s_mov_b32 s{d+2}, {nbytes}"); a(f"s_mov_b32 s{d+3}, 0x20000")

    def swapbits(self, d, x, t):
        a = self.a
        a(f"s_and_b32 s{d}, s{x}, 1")
        a(f"s_and_b32 s{t}, s{x}, 2")
        a(f"s_lshl1_add_u32 s{d}, s{t}, s{d}")
        a(f"s_lshr_b32 s{t}, s{x}, 1")
        a(f"s_and_b32 s{t}, s{t}, 2")
        a(f"s_add_u32 s{d}, s{d}, s{t}")

    def red_low3(self, op, v):
        a = self.a
        a(f"{op}_dpp v{v}, v{v}, v{v} quad_perm:[1,0,3,2] row_mask:0xf bank_mask:0xf")
        a(f"{op}_dpp v{v}, v{v}, v{v} quad_perm:[2,3,0,1] row_mask:0xf bank_mask:0xf")
        a(f"{op}_dpp v{v}, v{v}, v{v} row_half_mirror row_mask:0xf bank_mask:0xf")

    def red_high3(self, op, v, t):
        a = self.a
        a(f"{op}_dpp v{v}, v{v}, v{v} row_ror:8 row_mask:0xf bank_mask:0xf")
        a(f"v_mov_b32 v{t}, v{v}")
        a(f"v_permlane16_swap_b32 v{v}, v{t}")
        a(f"{op} v{v}, v{v}, v{t}")
        a(f"v_mov_b32 v{t}, v{v}")
        a(f"v_permlane32_swap_b32 v{v}, v{t}")
        a(f"{op} v{v}, v{v}, v{t}")

    def layernorm(self):
        a = self.a
        z = list(range(40, 50)); d = list(range(50, 60))
        a("v_add_f32 v60, v40, v41"); a("v_add_f32 v61, v42, v43"); a("v_add_f32 v62, v44, v45"); a("v_add_f32 v63, v46, v47")
        a("v_add_f32 v60, v60, v61"); a("v_add_f32 v62, v62, v63"); a("v_add_f32 v61, v48, v49")
        a("v_add_f32 v60, v60, v62"); a("v_add_f32 v60, v60, v61")
        self.red_low3("v_add_f32", 60); self.red_high3("v_add_f32", 60, 61)
        a(f"v_mul_f32 v63, {hx(f2u(1.0/640))}, v60")
        a("v_cvt_pk_bf16_f32 v60, 0, v63")
        for i in range(10): a(f"v_sub_f32 v{d[i]}, v{z[i]}, v60")
        a("v_mul_f32 v61, v50, v50"); a("v_mul_f32 v62, v51, v51")
        for i in range(2, 10, 2):
            a(f"v_fmac_f32 v61, v{d[i]}, v{d[i]}"); a(f"v_fmac_f32 v62, v{d[i+1]}, v{d[i+1]}")
        a("v_add_f32 v61, v61, v62")
        fill = ["v_sub_f32 v63, v63, v60", "v_mul_f32 v63, v63, v63"]
        for i in range(10): fill.append(f"v_cvt_pk_bf16_f32 v{d[i]}, 0, v{d[i]}")
        chain = ["v_add_f32_dpp v61, v61, v61 quad_perm:[1,0,3,2] row_mask:0xf bank_mask:0xf",
                 "v_add_f32_dpp v61, v61, v61 quad_perm:[2,3,0,1] row_mask:0xf bank_mask:0xf",
                 "v_add_f32_dpp v61, v61, v61 row_half_mirror row_mask:0xf bank_mask:0xf",
                 "v_add_f32_dpp v61, v61, v61 row_ror:8 row_mask:0xf bank_mask:0xf\nv_mov_b32 v62, v61",
                 "v_permlane16_swap_b32 v61, v62\nv_add_f32 v61, v61, v62\nv_mov_b32 v62, v61",
                 "v_permlane32_swap_b32 v61, v62\nv_add_f32 v61, v61, v62\n" + f"v_mul_f32 v61, {hx(f2u(1.0/640))}, v61\nv_sub_f32 v61, v61, v63\nv_max_f32 v61, 0, v61\n"
                 "v_cvt_pk_bf16_f32 v61, 0, v61\n"
                 f"v_add_f32 v61, {hx(f2u(1e-5))}, v61\nv_cvt_pk_bf16_f32 v61, 0, v61\nv_sqrt_f32 v61, v61",
                 "v_cvt_pk_bf16_f32 v61, 0, v61\nv_rcp_f32 v61, v61"]
        for c in chain:
            for _ in range(2):
                if fill: a(fill.pop(0))
            for s in c.split("\n"): a(s)
        for s in fill: a(s)
        for i in range(10): a(f"v_mul_f32 v{d[i]}, v{d[i]}, v61")
        for i in range(5): a(f"v_cvt_pk_bf16_f32 v{32+i}, v{d[2*i]}, v{d[2*i+1]}")

    def transpose(self, raw, dst, ms=range(8)):
        if isinstance(dst, int): dst = [dst + 4 * m for m in range(8)]
        for m in ms:
            for d in range(4):
                self.a(f"v_perm_b32 v{dst[m]+d}, v{raw+4*(2*d+1)+(m>>1)}, v{raw+4*(2*d)+(m>>1)}, s{sPhi if m & 1 else sPlo}")

    def combineB(self, accs, dsts):
        a = self.a
        for A in accs:
            a(f"v_permlane32_swap_b32 v{A}, v{A+2}")
            a(f"v_permlane32_swap_b32 v{A+1}, v{A+3}")
        for A, D in zip(accs, dsts):
            a(f"v_add_f32_dpp v{D}, v{A+2}, v{A} row_ror:8 row_mask:0xf bank_mask:0x3")
        for A, D in zip(accs, dsts):
            a(f"v_add_f32_dpp v{D}, v{A+1}, v{A+3} row_ror:8 row_mask:0xf bank_mask:0xc")

    def anyclear(self, regs, tmp):
        a = self.a
        regs = list(regs)
        a(f"v_max3_u32 v{tmp}, v{regs[0]}, v{regs[1]}, v{regs[2]}")
        regs = regs[3:]
        while len(regs) >= 2:
            a(f"v_max3_u32 v{tmp}, v{tmp}, v{regs[0]}, v{regs[1]}"); regs = regs[2:]
        if regs: a(f"v_max_u32 v{tmp}, v{tmp}, v{regs[0]}")
        a(f"v_cmp_eq_u32 vcc, -1, v{tmp}")

    def poll(self, name, loads, regs, tmp, first=None, cmp=None):
        a = self.a
        a(f"s_mov_b32 s{sCnt}, {SPIN}")
        if first:
            for s in first: a(s)
            a(f"s_branch {name}_c")
        a(f"{name}:")
        for s in loads: a(s)
        if first: a(f"{name}_c:")
        a(f"s_sub_u32 s{sCnt}, s{sCnt}, 1")
        a("s_waitcnt vmcnt(0)")
        a(f"s_cbranch_scc1 {name}_x")
        if cmp: a(cmp)
        else: self.anyclear(regs, tmp)
        a(f"s_cbranch_vccnz {name}")
        a(f"{name}_x:")

    def mpoll(self, name, loads, tmp, issued=False):
        a = self.a
        if not self.o["mpoll"]:
            return self.poll(name, [l[0] for l in loads], [r for _, f, n in loads for r in range(f, f + n)], tmp)
        M = [sM + 2 * k for k in range(len(loads))]
        depth, gap = self.o["pd"].get(name, (1, 0))
        nl = len(loads)
        a(f"s_mov_b32 s{sCnt}, {SPIN}")
        for k in range(0 if issued else depth):
            if k and gap: a(f"s_sleep {gap}")
            for l in loads: a(l[0])
        a(f"s_branch {name}_c")
        a(f"{name}:")
        for m, l in zip(M, loads):
            a(f"s_mov_b64 exec, s[{m}:{m+1}]")
            a(l[0])
        a("s_mov_b64 exec, -1")
        a(f"{name}_c:")
        a(f"s_sub_u32 s{sCnt}, s{sCnt}, 1")
        a(f"s_cbranch_scc1 {name}_t")
        for k, (m, (_, f, n)) in enumerate(zip(M, loads)):
            a(f"s_waitcnt vmcnt({depth*nl-1-k})")
            if n == 4:
                a(f"v_max3_u32 v{tmp}, v{f}, v{f+1}, v{f+2}")
                a(f"v_max_u32 v{tmp}, v{tmp}, v{f+3}")
            elif n == 2:
                a(f"v_max_u32 v{tmp}, v{f}, v{f+1}")
            a(f"v_cmp_eq_u32 s[{m}:{m+1}], -1, v{tmp if n > 1 else f}")
        a(f"s_or_b64 vcc, s[{M[0]}:{M[0]+1}], s[{M[1]}:{M[1]+1}]")
        for m in M[2:]: a(f"s_or_b64 vcc, vcc, s[{m}:{m+1}]")
        a(f"s_cbranch_scc1 {name}")
        a(f"{name}_x:")
        self.cold += [f"{name}_t:", "s_waitcnt vmcnt(0)", f"s_branch {name}_x"]

    def ldswait(self, name, off, n, sleep=0):
        a = self.a
        a("v_mov_b32 v13, 0")
        a(f"s_mov_b32 s{sCnt}, {SPIN*16}")
        a(f"{name}:")
        if sleep: a(f"s_sleep {sleep}")
        a(f"ds_read_b32 v14, v13 offset:{off}")
        a(f"s_sub_u32 s{sCnt}, s{sCnt}, 1")
        a("s_waitcnt lgkmcnt(0)")
        a(f"s_cbranch_scc1 {name}_x")
        a(f"v_cmp_gt_u32 vcc, {n}, v14")
        a(f"s_cbranch_vccnz {name}")
        a(f"{name}_x:")

    def pub(self, name, stores):
        a = self.a
        if not self.o["local"]:
            for s in stores: a(s + " sc1")
            return
        a(f"s_cmp_eq_u32 s{sLOC}, 1")
        a(f"s_cbranch_scc0 {name}_g")
        for s in stores: a((s + " " + self.o["stpol"]).rstrip())
        a(f"{name}_e:")
        self.cold += [f"{name}_g:"] + [s + " sc1" for s in stores] + [f"s_branch {name}_e"]

    def reduce24(self, y, z):
        a = self.a
        for rr in range(4): a(f"v_add_f32 v{z+rr}, v{y+rr}, v{y+4+rr}")
        for rr in range(4): a(f"v_add_f32 v{z+rr}, v{z+rr}, v{y+8+rr}")
        a(f"v_permlane32_swap_b32 v{z}, v{z+2}")
        a(f"v_permlane32_swap_b32 v{z+1}, v{z+3}")
        a(f"v_add_f32 v{z}, v{z}, v{z+2}")
        a(f"v_add_f32 v{z+1}, v{z+1}, v{z+3}")
        a(f"v_permlane16_swap_b32 v{z}, v{z+1}")
        a(f"v_add_f32 v{z}, v{z}, v{z+1}")
        a(f"v_add_f32_dpp v{z}, v{z}, v{z} row_ror:8 row_mask:0xf bank_mask:0xf")

    def read_frags(self, dst):
        a = self.a
        a(f"s_lshl_b32 s{sT}, s{sW}, 10")
        a(f"s_add_u32 s{sT}, s{sT}, {L_W}")
        a(f"v_add_u32 v4, s{sT}, v3")
        a("v_add_u32 v5, 0x10000, v4")
        for k in range(10):
            if k < 8: a(f"ds_read_b128 {vr(dst+4*k)}, v4 offset:{8192*k}")
            else: a(f"ds_read_b128 {vr(dst+4*k)}, v5 offset:{8192*(k-8)}")

    def ofinal_addr(self, st, va, vb, vo, vt):
        a = self.a
        a(f"v_bfe_u32 v{va}, v0, 2, 1")
        a(f"v_lshrrev_b32 v{vt}, 3, v0")
        a(f"v_lshl_add_u32 v{va}, v{va}, 4, v{vt}")
        a(f"v_and_b32 v{vb}, 3, v0")
        a(f"v_lshlrev_b32 v{vb}, 2, v{vb}")
        a(f"v_lshl_add_u32 v{va}, v{va}, 4, v{vb}")
        a(f"s_lshl_b32 s{sT+6}, s{st}, 10")
        a(f"s_add_u32 s{sT+6}, s{sT+6}, {L_OP}")
        a(f"v_add_u32 v{va}, s{sT+6}, v{va}")
        a(f"v_add_u32 v{vb}, 640, v{va}")
        a(f"v_and_b32 v{vo}, 3, v{vt}")
        a(f"v_lshlrev_b32 v{vo}, 8, v{vo}")
        a(f"v_lshrrev_b32 v{vt}, 5, v0")
        a(f"v_lshl_add_u32 v{vo}, v{vt}, 7, v{vo}")
        a(f"v_and_b32 v{vt}, 7, v0")
        a(f"v_lshl_add_u32 v{vo}, v{vt}, 1, v{vo}")
        a(f"s_mul_i32 s{sT+9}, s{sH}, 3")
        a(f"s_add_u32 s{sT+9}, s{sT+9}, s{st}")
        a(f"s_lshl_b32 s{sT+9}, s{sT+9}, 10")
        a(f"s_lshl4_add_u32 s{sT+9}, s{sB}, s{sT+9}")

    def ofinal(self, va, vb, vo):
        a = self.a
        a(f"ds_read2st64_b32 v[16:17], v{va} offset0:0 offset1:12")
        a(f"ds_read2st64_b32 v[18:19], v{vb} offset0:0 offset1:12")
        a(f"ds_read2st64_b32 v[20:21], v{va} offset0:24 offset1:36")
        a(f"ds_read2st64_b32 v[22:23], v{vb} offset0:24 offset1:36")
        a("s_waitcnt lgkmcnt(2)")
        a("v_add_f32 v16, v16, v17"); a("v_add_f32 v18, v18, v19")
        a("s_waitcnt lgkmcnt(0)")
        a("v_add_f32 v20, v20, v21"); a("v_add_f32 v22, v22, v23")
        a("v_add_f32 v16, v16, v18"); a("v_add_f32 v20, v20, v22")
        a("v_add_f32 v16, v16, v20")
        a("v_mov_b32_dpp v17, v16 quad_perm:[1,0,3,2] row_mask:0xf bank_mask:0xf")
        a("s_mov_b32 exec_lo, 0x55555555")
        a("s_mov_b32 exec_hi, 0x55555555")
        a("v_cvt_pk_bf16_f32 v24, v16, v17")
        self.pub("L_pubo", [f"buffer_store_dword v24, v{vo}, {srd(srdWS)}, s{sT+9} offen offset:{OBUF}"])
        a("s_mov_b64 exec, -1")

    def common_setup(self):
        a = self.a
        self.mksrd(srdWS, 24, WS_USED if not self.o["stamps"] else 4 << 20)
        self.mksrd(srdX, 4, 10240)

    def lane_setup(self):
        a = self.a
        a("v_lshlrev_b32 v3, 4, v0")
        a("v_lshrrev_b32 v2, 4, v0")
        a("v_and_b32 v7, 1, v6")
        a("v_lshl_add_u32 v2, v7, 2, v2")

    def byrole(self, dst, vals):
        a = self.a; o = self.o
        a(f"s_mov_b32 s{sT+3}, {vals[1]}")
        a(f"s_mov_b32 s{sT+4}, {vals[3]}")
        a(f"s_cmp_lt_u32 s{sR}, 24")
        a(f"s_cselect_b32 s{sT+3}, {vals[0]}, s{sT+3}")
        a(f"s_cselect_b32 s{sT+4}, {vals[2]}, s{sT+4}")
        a(f"s_cmp_ge_u32 s{sR}, {o['wk0']}")
        a(f"s_cselect_b32 s{sT+4}, s{sT+4}, s{sT+3}")
        a(f"s_cmp_eq_u32 s{sX}, 0")
        a(f"s_cselect_b32 s{dst}, s{sT+4}, s{sT+3}")

    def setphase(self, ph):
        o = self.o
        if o["dyn"] is not None: self.byrole(sBase, o["lvl1" if ph else "lvl0"])
        else:
            pat = lambda d: sum(1 << k for k in range(12) if (k + 1) * d // 12 != k * d // 12)
            self.byrole(sPat, [pat(d) for d in o["duty"][ph]])

    def ticket(self, k):
        a = self.a; o = self.o
        if o["dyn"] is None: return
        a(f"s_lshl_b32 s{sT+12}, s{sX}, 7")
        a(f"s_add_u32 s{sT+12}, s{sT+12}, {KBUF + 1024*k}")
        a(f"s_lshl_b32 s{sT+13}, s{sR}, 2")
        a("v_mov_b32 v11, 0")
        a(f"v_mov_b32 v10, s{sT+13}")
        a("v_lshlrev_b32 v9, 2, v0")
        if o["glob"]:
            a(f"s_sub_u32 s{sT+14}, {GBUF + 256*k - 128}, s{sT+12}")
            a("s_mov_b32 exec_lo, 0")
            a(f"v_add_u32 v9, s{sT+14}, v9")
        a("s_mov_b64 exec, 1")
        a(f"buffer_store_dword v11, v10, {srd(srdWS)}, s{sT+12} offen")
        a("s_mov_b64 exec, -1" if o["glob"] else "s_mov_b32 exec_lo, -1")
        a(f"buffer_load_dword v10, v9, {srd(srdWS)}, s{sT+12} offen sc1")
        a("s_waitcnt vmcnt(0)")
        a("v_cmp_eq_u32 vcc, 0, v10")
        a("s_mov_b64 exec, -1")
        a(f"s_bcnt1_i32_b32 s{sT+13}, vcc_lo")
        if o["glob"]:
            wl, wg = o["glob"]
            a(f"s_lshr_b32 s{sT+14}, s{sT+13}, 3")
            a(f"s_min_u32 s{sT+14}, s{sT+14}, 3")
            a(f"s_mul_i32 s{sT+15}, s{sX}, 3")
            a(f"s_bfm_b32 s{sT+14}, s{sT+14}, s{sT+15}")
            a(f"s_andn2_b32 exec_hi, s{sT+14}, vcc_hi")
            a("s_mov_b32 exec_lo, 0")
            a(f"s_cbranch_execz L_nomark{k}")
            a(f"buffer_store_dword v11, v9, {srd(srdWS)}, s{sT+12} offen sc1")
            a(f"L_nomark{k}:")
            a("s_mov_b64 exec, -1")
            a(f"s_bcnt1_i32_b32 s{sT+14}, vcc_hi")
            a(f"s_mul_i32 s{sT+13}, s{sT+13}, {wl}")
            a(f"s_mul_i32 s{sT+14}, s{sT+14}, {wg}")
            a(f"s_add_u32 s{sT+13}, s{sT+13}, s{sT+14}")
            a(f"s_lshr_b32 s{sT+13}, s{sT+13}, 4")
            a(f"s_max_u32 s{sT+13}, s{sT+13}, 1")
        a(f"v_mov_b32 v10, s{sT+13}")
        a(f"ds_write_b32 v11, v10 offset:{L_SM+48+4*k}")

    def readlevel(self, k):
        a = self.a; o = self.o
        if o["dyn"] is None: return
        lo, hi, gain = o["dyn"][k]
        a("v_mov_b32 v13, 0")
        a(f"ds_read_b32 v13, v13 offset:{L_SM+48+4*k}")
        a("s_waitcnt lgkmcnt(0)")
        a(f"v_readfirstlane_b32 s{sT+3}, v13")
        a(f"s_cmp_eq_u32 s{sT+3}, 0")
        a(f"s_cselect_b32 s{sT+3}, 16, s{sT+3}")
        a(f"s_sub_i32 s{sT+4}, {lo}, s{sT+3}")
        a(f"s_max_i32 s{sT+4}, s{sT+4}, 0")
        a(f"s_sub_i32 s{sT+5}, s{sT+3}, {hi}")
        a(f"s_max_i32 s{sT+5}, s{sT+5}, 0")
        a(f"s_cmp_lg_u32 s{sT+5}, 0")
        a(f"s_cselect_b32 s{sT+6}, {o['step'][k]}, -1")
        a(f"s_add_i32 s{sAlt}, s{sBase}, s{sT+6}")
        a(f"s_min_u32 s{sAlt}, s{sAlt}, 3")
        a(f"s_add_u32 s{sT+4}, s{sT+4}, s{sT+5}")
        a(f"s_mul_i32 s{sPat}, s{sT+4}, {gain}")
        a(f"s_lshr_b32 s{sPat}, s{sPat}, 2")

    def stream_setup(self):
        self.issued = 0; self.done = 0
        self.free = list(range(self.o["ring"])); self.slot = {}
        self.maxslot = self.o["ring"]
        self.Wmax = self.o["Wl"][3] + (2 if self.o["gwait"] else 0) if self.o["dyn"] is not None else self.o["Wk"]

    def partoff(self):
        a = self.a; c = self.o["wpart"]
        a(f"s_lshr_b32 s{sOff}, s{sGi}, {c}")
        a(f"s_lshl_b32 s{sOff}, s{sOff}, {c+2}")
        a(f"s_and_b32 s{sT+7}, s{sGi}, {(1 << c) - 1}")
        a(f"s_add_u32 s{sOff}, s{sOff}, s{sT+7}")
        a(f"s_mulk_i32 s{sOff}, 3072")

    def wait_out(self, n):
        if self.issued - self.done > n:
            self.a(f"s_waitcnt vmcnt({n})"); self.done = self.issued - n

    def issue(self, throttle=True):
        a = self.a; o = self.o
        i = self.issued
        if i >= 192: return
        t = i % 3
        if t == 0 and i > 0 and o["wpart"] is not None:
            a(f"s_add_u32 s{sGi}, s{sGi}, 1")
            a(f"s_and_b32 s{sGi}, s{sGi}, 31")
            self.partoff()
        elif t == 0 and i > 0 and o["skew"] is not None:
            a("v_add_u32 v253, 1, v253")
            a("v_and_b32 v253, 31, v253")
            a(f"v_mad_u32_u24 v12, v253, s{sPlo}, v254")
        elif t == 0 and i > 0 and o["gmul"] != 1:
            a(f"s_add_u32 s{sOff}, s{sOff}, {3072*o['gmul']}")
            a(f"s_sub_u32 s{sT+7}, s{sOff}, s{srdK+2}")
            a(f"s_cselect_b32 s{sOff}, s{sOff}, s{sT+7}")
        elif t == 0 and i > 0:
            a(f"s_addk_i32 s{sOff}, {384*o['krows']}")
            a(f"s_cmp_eq_u32 s{sOff}, s{srdK+2}" if o["krows"] == 8 else f"s_cmpk_eq_u32 s{sOff}, {12288*o['krows']}")
            a(f"s_cselect_b32 s{sOff}, 0, s{sOff}")
        if o["dyn"] is not None:
            if t == 0 and i >= 6:
                a(f"s_sub_u32 s{sPat}, s{sPat}, 1")
                a(f"s_cselect_b32 s{sPat}, 0, s{sPat}")
                a(f"s_cselect_b32 s{sLvl}, s{sBase}, s{sAlt}")
                a(f"s_bitcmp1_b32 s{sLvl}, 1")
                a("s_cselect_b64 vcc, -1, 0")
            Wl = o["Wend"] if (o["Wend"] and i >= o["endfrom"]) else o["Wl"]
            if throttle and self.issued - self.done > Wl[0] - 1 and (t == 0 or not o["gwait"]):
                self.nlab += 1; n = self.nlab
                a(f"s_bitcmp1_b32 s{sLvl}, 0")
                self.wait_out(Wl[3] - 1)
                a(f"s_cbranch_vccnz L_hi{n}")
                a(f"s_waitcnt vmcnt({Wl[1]-1})")
                a(f"s_cbranch_scc1 L_go{n}")
                a(f"s_waitcnt vmcnt({Wl[0]-1})")
                a(f"L_hi{n}:")
                a(f"s_cbranch_scc1 L_go{n}")
                a(f"s_waitcnt vmcnt({Wl[2]-1})")
                a(f"L_go{n}:")
        else:
            if t == 0 and i >= 6:
                a(f"s_bitcmp1_b32 s{sPat}, {(i // 3) % 12}")
                a("s_cselect_b64 vcc, -1, 0")
            if throttle and self.issued - self.done > o["W"] - 1:
                self.nlab += 1
                self.wait_out(o["Wk"] - 1)
                a(f"s_cbranch_vccnz L_wk{self.nlab}")
                a(f"s_waitcnt vmcnt({o['W']-1})")
                a(f"L_wk{self.nlab}:")
        self.free.sort()
        s = self.free.pop(0); assert s < self.maxslot, (i, s)
        self.slot[i] = s
        a(f"buffer_load_dwordx4 {vr(64+4*s)}, v12, {srd(srdK if i < 96 else srdV)}, s{sOff} offen offset:{128*t} {o['kvpol']}")
        self.issued += 1

    def consumeK(self, g):
        a = self.a
        self.wait_out(self.issued - 3 * (g + 1))
        base = [64 + 4 * self.slot[3 * g + t] for t in range(3)]
        acc = [32 + g, 13, 14]
        for d in range(4):
            for t in range(3):
                c = "0" if d == 0 else f"v{acc[t]}"
                a(f"v_dot2_f32_bf16 v{acc[t]}, v{base[t]+d}, v{16+4*t+d}, {c}")
        for t in range(3): self.free.append(self.slot.pop(3 * g + t))
        a("v_add_f32 v13, v13, v14")
        a(f"v_add_f32 v{32+g}, v{32+g}, v13")
        self.red_low3("v_add_f32", 32 + g)
        a(f"v_cvt_pk_bf16_f32 v{32+g}, 0, v{32+g}")
        a(f"v_mul_f32 v{32+g}, {hx(f2u(192 ** -0.5))}, v{32+g}")
        a(f"v_cvt_pk_bf16_f32 v{32+g}, 0, v{32+g}")
        if g & 1:
            p, q = 32 + g - 1, 32 + g
            if g == 1: a(f"v_max_f32 v15, v{p}, v{q}")
            else: a(f"v_max3_f32 v15, v15, v{p}, v{q}")

    def consumeV(self, g, fine=False):
        a = self.a
        A = 4 if g & 1 else 8
        for d in range(4): a(f"v_and_b32 v{A+d}, v{32+g}, v{28+d}")
        i0 = 96 + 3 * g
        if not fine: self.wait_out(self.issued - (i0 + 3))
        for t in range(3):
            if fine: self.wait_out(self.issued - (i0 + t + 1))
            s = self.slot.pop(i0 + t); self.free.append(s)
            c = "0" if g == 0 else vr(16 + 4 * t)
            a(f"v_mfma_f32_16x16x32_bf16 {vr(16+4*t)}, {vr(A)}, {vr(64+4*s)}, {c}")

    def sec_start(self):
        a = self.a; o = self.o
        a(f"{NAME}_kernel:")
        a("s_cmpk_ge_u32 s2, 0x100")
        a("s_cbranch_scc1 L_end")
        a("s_load_dwordx16 s[4:19], s[0:1], 0")
        a("s_load_dwordx4 s[20:23], s[0:1], 64")
        a("s_load_dwordx2 s[24:25], s[0:1], 80")
        if o["stamps"] or o["hold"]: a(f"s_memrealtime s[{sST}:{sST+1}]")
        a(f"s_getpc_b64 s[{sT+8}:{sT+9}]")
        a("L_ipc:")
        a(f"s_mov_b32 s{sT+10}, L_last-L_ipc")
        a(f"s_mov_b32 s{sT+11}, 0x20000")
        a(f"s_lshr_b32 s{sR}, s2, 3")
        a(f"s_lshl_b32 s{sT+3}, s{sR}, 10")
        a("v_lshlrev_b32 v1, 1, v0")
        a(f"buffer_load_ushort v255, v1, s[{sT+8}:{sT+11}], s{sT+3} offen")
        a(f"v_readfirstlane_b32 s{sW}, v0")
        a("v_and_b32 v0, 63, v0")
        a(f"s_and_b32 s{sX}, s2, 7")
        a(f"s_lshr_b32 s{sW}, s{sW}, 6")
        a("v_and_b32 v1, 7, v0")
        a("v_lshlrev_b32 v1, 4, v1")
        a("v_lshrrev_b32 v6, 3, v0")
        a(f"s_and_b32 s{sT}, s{sR}, 3")
        a(f"s_lshl2_add_u32 s{sH}, s{sX}, s{sT}")
        a(f"s_lshr_b32 s{sB}, s{sR}, 2")
        self.lane_setup()
        a(f"s_cmp_ge_u32 s{sW}, 4")
        a("s_cbranch_scc1 L_helper")
        a(f"s_lshl_b32 s{sT}, s{sB}, 5")
        a(f"s_add_u32 s{sT}, s{sT}, s{sH}")
        a(f"s_lshl4_add_u32 s{sT}, s{sT}, s{sW}")
        a(f"s_add_u32 s{sT}, s{sT}, 12")
        a(f"s_mov_b32 s{srdK+2}, 98304")
        a(f"s_mul_i32 s{sT}, s{sT}, s{srdK+2}")
        if o["rot4"]:
            rx, rh, rb, rw = o["rot4"]
            a(f"s_mul_i32 s{sOff}, s{sX}, {rx}")
            a(f"s_and_b32 s{sT+1}, s{sR}, 3")
            a(f"s_mul_i32 s{sT+1}, s{sT+1}, {rh}")
            a(f"s_add_u32 s{sOff}, s{sOff}, s{sT+1}")
            a(f"s_mul_i32 s{sT+1}, s{sB}, {rb}")
            a(f"s_add_u32 s{sOff}, s{sOff}, s{sT+1}")
            if rw:
                a(f"s_mul_i32 s{sT+1}, s{sW}, {rw}")
                a(f"s_add_u32 s{sOff}, s{sOff}, s{sT+1}")
        elif o["rot3"]:
            rx, rr, rw = o["rot3"]
            a(f"s_mul_i32 s{sOff}, s{sX}, {rx}")
            a(f"s_mul_i32 s{sT+1}, s{sR}, {rr}")
            a(f"s_add_u32 s{sOff}, s{sOff}, s{sT+1}")
            a(f"s_mul_i32 s{sT+1}, s{sW}, {rw}")
            a(f"s_add_u32 s{sOff}, s{sOff}, s{sT+1}")
        else:
            a(f"s_mul_i32 s{sOff}, s2, {o['rot']}")
        a(f"s_and_b32 s{sOff}, s{sOff}, 31")
        kr = o["krows"]
        if o["wpart"] is not None: a(f"s_mov_b32 s{sGi}, s{sOff}")
        if o["skew"] is not None: a(f"s_mov_b32 s{sT+2}, s{sOff}")
        a(f"s_mulk_i32 s{sOff}, {384*kr}")
        if kr == 8:
            a("v_mul_u32_u24 v12, 384, v6")
        elif kr == 1:
            a("v_mul_u32_u24 v12, 12288, v6")
        else:
            a(f"v_lshrrev_b32 v12, {kr.bit_length()-1}, v6")
            a(f"v_mul_u32_u24 v12, {12288*kr}, v12")
            a(f"v_and_b32 v13, {kr-1}, v6")
            a("v_mul_u32_u24 v13, 384, v13")
            a("v_add_u32 v12, v12, v13")
        a("v_add_u32 v12, v12, v1")
        if o["skew"] is not None:
            a("v_mov_b32 v254, v12")
            a(f"v_lshrrev_b32 v253, {kr.bit_length()-1}, v6")
            a(f"v_mul_u32_u24 v253, {o['skew']}, v253")
            a(f"v_add_u32 v253, s{sT+2}, v253")
            a("v_and_b32 v253, 31, v253")
            a(f"s_movk_i32 s{sPlo}, {384*kr}")
            a(f"v_mad_u32_u24 v12, v253, s{sPlo}, v254")
            a(f"s_mov_b32 s{sOff}, 0")
        if o["wpart"] is not None:
            a(f"s_mul_i32 s{sT+1}, s{sW}, s{srdK+2}")
            a(f"s_sub_u32 s{sT}, s{sT}, s{sT+1}")
            a(f"s_mulk_i32 s{sT+1}, 0")
            a(f"s_lshl_b32 s{sT+1}, s{sW}, {o['wpart']}")
            a(f"s_mulk_i32 s{sT+1}, 3072")
            a(f"v_add_u32 v12, s{sT+1}, v12")
            a(f"s_mov_b32 s{srdK+2}, 393216")
            self.partoff()
        a(f"s_mov_b32 s{srdK+3}, 0x20000")
        a("s_waitcnt lgkmcnt(0)")
        if o["rotmem"]:
            a(f"s_lshl2_add_u32 s{sT+1}, s2, s{sW}")
            a(f"s_lshl_b32 s{sT+1}, s{sT+1}, 2")
            a(f"s_add_u32 s{sT+1}, s{sT+1}, {5 << 20}")
            a(f"s_load_dword s{sOff}, s[24:25], s{sT+1}")
            a("s_waitcnt lgkmcnt(0)")
        a(f"s_add_u32 s{srdK}, s6, s{sT}")
        a(f"s_addc_u32 s{srdK+1}, s7, 0")
        self.stream_setup()
        for _ in range(o["W0"]): self.issue(throttle=False)
        a("s_branch L_stream")

        a("L_helper:")
        a("v_mov_b32 v8, 0"); a("v_mov_b32 v9, 0")
        a(f"ds_write_b64 v8, v[8:9] offset:{L_SM+40}")
        if True:
            a(f"ds_write_b32 v8, v8 offset:{L_SM+36}")
            a(f"ds_write_b64 v8, v[8:9] offset:{L_SM+48}")
            a(f"ds_write_b64 v8, v[8:9] offset:{L_SM+56}")
        a(f"s_mov_b32 s{sPlo}, 0x05040100")
        a(f"s_mov_b32 s{sPhi}, 0x07060302")
        a(f"s_sub_u32 s{sT+5}, s{sW}, 5")
        a(f"s_cmp_ge_u32 s{sR}, 24")
        a("s_cbranch_scc1 L_clear")
        a(f"s_cmp_lg_u32 s{sW}, 4")
        a("s_cbranch_scc1 L_xld")
        if o["prio"]: a(f"s_setprio {o['prio']}")
        a(f"s_cmp_ge_u32 s{sR}, 12")
        a(f"s_cselect_b32 s{sT+3}, 1, 0")
        a(f"s_mul_i32 s{sT+4}, s{sT+3}, 12")
        a(f"s_sub_u32 s{sT+4}, s{sR}, s{sT+4}")
        a(f"s_mul_i32 s{sT+5}, s{sT+3}, {320*12288}")
        a(f"s_mul_i32 s{sT+6}, s{sX}, 1536")
        a(f"s_add_u32 s{sT+5}, s{sT+5}, s{sT+6}")
        a(f"s_lshl_b32 s{sT+6}, s{sT+4}, 7")
        a(f"s_add_u32 s{sT+5}, s{sT+5}, s{sT+6}")
        a(f"v_mul_u32_u24 v7, {8*12288}, v2")
        a("v_add_u32 v7, v7, v1")
        a(f"s_movk_i32 s{sT+6}, 12288")
        a(f"s_mov_b32 s{sT+7}, {57*12288}")
        a("s_waitcnt lgkmcnt(0)")
        self.mksrd(srdWt, 10, 7864320)
        for kb in range(5):
            for e in range(8):
                a(f"buffer_load_dwordx4 {vr(64+32*kb+4*e)}, v7, {srd(srdWt)}, s{sT+5} offen {o['wpol']}")
                if kb * 8 + e < 39: a(f"s_add_u32 s{sT+5}, s{sT+5}, s{sT+6 if e < 7 else sT+7}")
        a("s_barrier")
        a("s_branch L_h0q")
        a("L_clear:")
        for k in range(4): a(f"v_mov_b32 v{8+k}, -1")
        a(f"s_sub_u32 s{sT+3}, s2, 192")
        a(f"s_lshl2_add_u32 s{sT+3}, s{sT+3}, s{sW}")
        a(f"s_sub_u32 s{sT+3}, s{sT+3}, 4")
        a(f"s_mulk_i32 s{sT+3}, 6144")
        a(f"s_add_u32 s{sT+4}, s{sT+3}, 4096")
        a("s_waitcnt lgkmcnt(0)")
        self.mksrd(srdWt, 24, CLR_END)
        for k in range(6):
            a(f"buffer_store_dwordx4 v[8:11], v3, {srd(srdWt)}, s{sT+3+(k>>2)} offen offset:{1024*(k%4)} sc1")
        a("s_barrier")
        self.stamp_init()
        self.common_setup()
        a("s_waitcnt vmcnt(0)")
        a(f"s_cmp_eq_u32 s{sW}, 4")
        a("s_cbranch_scc1 L_h0c")
        a("s_branch L_rowsdone")
        a("L_xld:")
        a(f"s_mul_i32 s{sT+6}, s{sT+5}, 3840")
        a("v_lshlrev_b32 v5, 2, v0")
        a("s_waitcnt lgkmcnt(0)")
        self.common_setup()
        for k in range(3):
            a(f"buffer_load_dwordx4 {vr([32, 64, 70][k])}, v3, {srd(srdX)}, s{sT+6} offen offset:{1280*k}")
            a(f"buffer_load_dword v{[36, 68, 74][k]}, v5, {srd(srdX)}, s{sT+6} offen offset:{1280*k+1024}")
        a("s_barrier")
        self.stamp_init()
        a(f"s_mul_i32 s{sT+7}, s{sT+5}, 3")
        a(f"s_mul_i32 s{sT+8}, s{sT+7}, {XRS}")
        a(f"v_add_u32 v12, s{sT+8}, v3")
        a(f"v_add_u32 v13, s{sT+8}, v5")
        a(f"s_add_u32 s{sT+8}, s{sT+7}, 3")
        a(f"s_min_u32 s{sT+8}, s{sT+8}, 8")
        a("s_waitcnt vmcnt(0)")
        if o["fine0"]: self.stamp(10)
        a("L_lnrow:")
        for i in range(5):
            a(f"v_lshlrev_b32 v{40+2*i}, 16, v{32+i}"); a(f"v_and_b32 v{41+2*i}, 0xffff0000, v{32+i}")
        self.layernorm()
        a(f"ds_write_b128 v12, v[32:35] offset:{L_XN}")
        a(f"ds_write_b32 v13, v36 offset:{L_XN+1024}")
        a(f"v_add_u32 v12, {XRS}, v12")
        a(f"v_add_u32 v13, {XRS}, v13")
        a("s_waitcnt lgkmcnt(0)")
        for i in range(5): a(f"v_mov_b32 v{32+i}, v{64+i}")
        for i in range(5): a(f"v_mov_b32 v{64+i}, v{70+i}")
        a(f"s_add_u32 s{sT+7}, s{sT+7}, 1")
        a(f"s_cmp_lt_u32 s{sT+7}, s{sT+8}")
        a("s_cbranch_scc1 L_lnrow")
        a("L_rowsdone:")
        a("v_mov_b32 v4, 0")
        a("v_mov_b32 v7, 1")
        a("s_mov_b64 exec, 1")
        a(f"ds_add_u32 v4, v7 offset:{L_SM+40}")
        a("s_mov_b64 exec, -1")
        if o["fine0"]: self.stamp(11)
        a("s_branch L_h123")

    def sec_h0q(self):
        a = self.a; o = self.o
        a("L_h0c:")
        self.mksrd(srdDBG, 22, 256)
        self.ldswait("L_rowsc", L_SM + 40, 3)
        a(f"s_lshl_b32 s{sT+4}, s{sX}, 5")
        a("v_mov_b32 v7, 1")
        a("s_mov_b64 exec, 1")
        if o["fine0"]: self.stamp(10)
        a(f"buffer_atomic_add v7, v3, {srd(srdDBG)}, s{sT+4} offen sc1")
        a("s_waitcnt vmcnt(0)")
        if o["fine0"]: self.stamp(11)
        if o["csleep"]: a(f"s_sleep {o['csleep']}")
        a("s_mov_b64 exec, 0xff")
        a("v_lshlrev_b32 v13, 5, v0")
        a(f"s_mov_b32 s{sCnt}, {SPIN}")
        a("s_branch L_qwait")
        a("L_h0q:")
        self.stamp_init()
        self.stamp(1)
        self.common_setup()
        self.mksrd(srdDBG, 22, 256)
        a("v_and_b32 v8, 7, v0")
        a(f"v_mul_u32_u24 v8, {XRS}, v8")
        a("v_lshl_add_u32 v8, v2, 4, v8")
        a(f"s_mul_i32 s{sT+5}, s{sT+3}, 640")
        a(f"v_add_u32 v8, s{sT+5}, v8")
        TQ = [224, 64, 96, 128, 160]
        for kb in range(5):
            a(f"s_waitcnt vmcnt({8*(4-kb)})")
            self.transpose(64 + 32 * kb, TQ[kb])
        if o["fine0"]: self.stamp(10)
        self.ldswait("L_rows", L_SM + 40, 3)
        if o["fine0"]: self.stamp(11)
        for kb in range(5): a(f"ds_read_b128 {vr(12+4*kb)}, v8 offset:{L_XN+128*kb}")
        for kb in range(5):
            a(f"s_waitcnt lgkmcnt({4-kb})")
            for m in range(8):
                c = "0" if kb == 0 else vr(32 + 4 * m)
                a(f"v_mfma_f32_16x16x32_bf16 {vr(32+4*m)}, {vr(12+4*kb)}, {vr(TQ[kb]+4*m)}, {c}")
        self.combineB([32 + 4 * m for m in range(8)], [64 + m for m in range(8)])
        if o["fine0"]: self.stamp(8)
        a("v_lshlrev_b32 v13, 5, v0")
        a("s_mov_b64 exec, 0xff")
        ld = f"buffer_load_dword v14, v13, {srd(srdDBG)}, 0 offen"
        self.poll("L_qwait", [ld + " sc1"], None, None, first=[ld], cmp="v_cmp_gt_u32 vcc, 8, v14")
        a("s_mov_b64 exec, -1")
        a(f"s_getreg_b32 s{sT+9}, hwreg(HW_REG_XCC_ID, 0, 4)")
        a(f"s_lshl_b32 s{sT+8}, s{sX}, 7")
        a(f"s_add_u32 s{sT+8}, s{sT+8}, {TBUF}")
        a(f"s_lshl2_add_u32 s{sT+6}, s{sR}, s{sT+8}")
        a(f"v_mov_b32 v12, s{sT+9}")
        a(f"s_mul_i32 s{sT+5}, s{sX}, 24")
        a(f"s_add_u32 s{sT+7}, s{sT+5}, s{sR}")
        a(f"s_lshl_b32 s{sT+7}, s{sT+7}, 11")
        a(f"s_add_u32 s{sT+7}, s{sT+7}, {QBUF}")
        a(f"s_cmp_lt_u32 s{sR}, 24")
        a(f"s_cselect_b64 s[{sT+14}:{sT+15}], -1, 0")
        def publish(pol, tag):
            L = [f"s_mov_b64 exec, s[{sT+14}:{sT+15}]", f"s_cbranch_execz {tag}"]
            L += [f"buffer_store_dwordx4 {vr(64+4*q)}, v3, {srd(srdWS)}, s{sT+7} offen offset:{1024*q} {pol}".rstrip() for q in range(2)]
            L += [f"{tag}:", "s_mov_b64 exec, 1", f"buffer_store_dword v12, v3, {srd(srdWS)}, s{sT+6} offen {pol}".rstrip(), "s_mov_b64 exec, -1"]
            return L
        for s in publish("" if o["local"] else "sc1", "L_qp0"): a(s)
        self.stamp(2)
        a("v_lshl_add_u32 v8, v6, 10, v1")
        a(f"s_and_b32 s{sT+10}, s{sR}, 3")
        a(f"s_mul_i32 s{sT+10}, s{sT+10}, 3")
        a(f"s_add_u32 s{sT+10}, s{sT+10}, s{sT+5}")
        a(f"s_lshl_b32 s{sT+10}, s{sT+10}, 11")
        self.swapbits(sT + 11, sB, sT + 12)
        a(f"s_lshl_b32 s{sT+11}, s{sT+11}, 7")
        a(f"s_add_u32 s{sT+10}, s{sT+10}, s{sT+11}")
        a(f"s_add_u32 s{sT+11}, s{sT+10}, {QBUF + 12*2048}")
        a(f"s_add_u32 s{sT+10}, s{sT+10}, {QBUF}")
        a("v_lshrrev_b32 v9, 4, v0")
        a("v_lshl_add_u32 v9, v9, 7, v1")
        a("v_and_b32 v10, 8, v0")
        a("v_add_u32 v9, v9, v10")
        a(f"s_mov_b32 s{sCnt}, {o['n1']}")
        a(f"s_mov_b32 s{sT+13}, 0")
        a("L_pq:")
        if o["qsleep"]: a(f"s_sleep {o['qsleep']}")
        a("s_mov_b32 exec_hi, 0xffff")
        for rb in range(2): a(f"buffer_load_dwordx4 {vr(16+4*rb)}, v8, {srd(srdWS)}, s{sT+10+rb} offen sc1")
        a(f"buffer_load_dwordx4 v[24:27], v1, {srd(srdWS)}, s{sT+8} offen sc1")
        a(f"s_sub_u32 s{sCnt}, s{sCnt}, 1")
        a("s_waitcnt vmcnt(0)")
        a("s_cbranch_scc1 L_pq_late")
        self.anyclear(range(16, 28), 4)
        a("s_cbranch_vccnz L_pq")
        a("L_pq_x:")
        for j in range(4): a(f"v_add_f32 v{16+j}, v{16+j}, v{20+j}")
        for k in range(4): a(f"v_xor_b32 v{24+k}, s{sT+9}, v{24+k}")
        a("v_cvt_pk_bf16_f32 v16, v16, v17")
        a("v_cvt_pk_bf16_f32 v17, v18, v19")
        a(f"ds_write_b64 v9, v[16:17] offset:{L_Q}")
        a("v_or3_b32 v24, v24, v25, v26")
        a("v_or_b32 v24, v24, v27")
        a("v_cmp_ne_u32 vcc, 0, v24")
        a("s_mov_b64 exec, -1")
        a("s_cmp_eq_u64 vcc, 0")
        a(f"s_cselect_b32 s{sLOC}, 1, 0")
        a(f"v_mov_b32 v10, s{sLOC}")
        a("v_mov_b32 v11, 0")
        a(f"ds_write_b32 v11, v10 offset:{L_SM+32}")
        a(f"s_or_b32 s{sT+13}, s{sT+13}, s{sLOC}")
        a("s_cbranch_scc0 L_pq_far")
        a("L_pq_done:")
        self.cold += ["L_pq_late:", f"s_cmp_eq_u32 s{sT+13}, 0", "s_cbranch_scc0 L_pq_x", f"s_mov_b32 s{sT+13}, 1", f"s_mov_b32 s{sCnt}, {SPIN}"] \
            + publish("sc1", "L_qp1") + ["s_branch L_pq"]
        self.cold += ["L_pq_far:"] + publish("sc1", "L_qp2") + ["s_branch L_pq_done"]
        a("s_waitcnt lgkmcnt(0)")
        if o["prio"]: a("s_setprio 0")
        self.stamp(3)
        a("s_barrier")
        self.ticket(0)
        a("s_barrier")
        self.read_frags(176)
        self.ticket(1)
        a("s_waitcnt lgkmcnt(0)")
        a("s_barrier")
        if o["dyn"] is not None:
            self.ldswait("L_vprog0", L_SM + 44, 1, sleep=4)
            self.ticket(2)
        a("s_branch L_wo")

    def sec_stream(self):
        a = self.a; o = self.o
        a("L_stream:")
        self.stamp_init()
        if o["fine0"]: self.stamp(9)
        self.mksrd(srdV, 8, 98304 if o["wpart"] is None else 393216, f"s{sT}")
        self.common_setup()
        a("v_and_b32 v4, 1, v0")
        a("v_lshlrev_b32 v4, 4, v4")
        a("v_mov_b32 v7, 0xffff")
        a("v_lshlrev_b32 v4, v4, v7")
        a("v_bfe_u32 v7, v0, 1, 2")
        for d in range(4):
            a(f"v_cmp_eq_u32 vcc, {d}, v7")
            a(f"v_cndmask_b32 v{28+d}, 0, v4, vcc")
        self.setphase(0)
        if o["dyn"] is not None:
            a(f"s_mov_b32 s{sPat}, 0")
            a(f"s_mov_b32 s{sLvl}, 1")
        a("s_mov_b64 vcc, 0")
        a("s_barrier")
        self.stamp(1)
        while self.issued < o["ring"]: self.issue()
        self.stamp(2)
        a("s_barrier")
        self.stamp(3)
        for t in range(3): a(f"ds_read_b128 {vr(16+4*t)}, v1 offset:{L_Q+128*t}")
        self.setphase(1)
        a("s_waitcnt lgkmcnt(0)")
        keep = (self.Wmax + 2) // 3 + 1
        g = 0
        while g < 32:
            lag = self.issued // 3 - g
            for _ in range(2 if lag > keep else 1):
                if g < 32: self.consumeK(g); g += 1
            if g < 32:
                for _ in range(3): self.issue()
                if self.issued == o["ring"] + 3 * o["d0"]: self.readlevel(0)
        self.maxslot = 27
        assert all(s < 27 for s in self.slot.values())
        self.red_high3("v_max_f32", 15, 13)
        a(f"s_lshl_b32 s{sT}, s{sW}, 2")
        a(f"v_mov_b32 v14, s{sT}")
        a("s_mov_b64 exec, 1")
        a(f"ds_write_b32 v14, v15 offset:{L_SM}")
        a("s_mov_b64 exec, -1")
        for _ in range(o["burst3"]): self.issue(throttle=False)
        a("s_waitcnt lgkmcnt(0)")
        self.stamp(4)
        a("s_barrier")
        self.stamp(5)
        a("v_mov_b32 v13, 0")
        a(f"ds_read_b128 v[8:11], v13 offset:{L_SM}")
        a(f"ds_read_b32 v16, v13 offset:{L_SM+32}")
        self.read_frags(176)
        a("s_waitcnt lgkmcnt(10)")
        a(f"v_readfirstlane_b32 s{sLOC}, v16")
        a("v_max3_f32 v15, v8, v9, v10")
        a("v_max_f32 v15, v15, v11")
        l2e = hx(f2u(1.4426950408889634))
        for g in range(32):
            a(f"v_sub_f32 v{32+g}, v{32+g}, v15")
            a(f"v_mul_f32 v{32+g}, {l2e}, v{32+g}")
            a(f"v_exp_f32 v{32+g}, v{32+g}")
            if g == 2: a("v_add_f32 v13, v32, v33")
            elif g > 2: a(f"v_add_f32 v13, v13, v{32+g-1}")
        a("v_add_f32 v13, v13, v63")
        self.red_high3("v_add_f32", 13, 15)
        a("s_mov_b64 exec, 1")
        a(f"ds_write_b32 v14, v13 offset:{L_SM+16}")
        a("s_mov_b64 exec, -1")
        for _ in range(o["burst4"]): self.issue(throttle=False)
        a("s_waitcnt lgkmcnt(0)")
        a("s_barrier")
        self.stamp(6)
        a("v_mov_b32 v13, 0")
        a(f"ds_read_b128 v[8:11], v13 offset:{L_SM+16}")
        a("s_waitcnt lgkmcnt(0)")
        a("v_add_f32 v8, v8, v9"); a("v_add_f32 v10, v10, v11"); a("v_add_f32 v13, v8, v10")
        a("v_rcp_f32 v13, v13")
        for g in range(32):
            a(f"v_mul_f32 v{32+g}, v{32+g}, v13")
            a(f"v_cvt_pk_bf16_f32 v{32+g}, v{32+g}, v{32+g}")
        while self.issued % 3: self.issue()
        v0issued = self.issued
        a(f"s_mul_i32 s{sT}, s{sW}, 3072")
        a(f"v_add_u32 v15, s{sT}, v3")
        if o["woafter"]: self.ofinal_addr(sW, 172, 173, 174, 175)
        g = 0
        while g < 32:
            lag = (self.issued - 96) // 3 - g
            if self.issued >= 192:
                self.consumeV(g, fine=True); g += 1
                continue
            if o["Wend"] and self.issued >= o["endfrom"]: keep = (o["Wend"][3] + 2) // 3 + 1
            n = 2 if lag > keep else (1 if lag == keep else 0)
            for _ in range(n): self.consumeV(g); g += 1
            for _ in range(3): self.issue()
            if self.issued == v0issued + 3: self.readlevel(1)
            if o["dyn"] is not None and self.issued == 96 + 3 * o["cp3"]:
                a("v_mov_b32 v13, 0")
                a("v_mov_b32 v14, 1")
                a(f"ds_write_b32 v13, v14 offset:{L_SM+44}")
            if self.issued == 96 + 3 * o["wolate"]:
                a("v_mov_b32 v13, 0")
                a("v_mov_b32 v14, 1")
                a("s_mov_b64 exec, 1")
                a(f"ds_add_u32 v13, v14 offset:{L_SM+36}")
                a("s_mov_b64 exec, -1")
            if self.issued == 96 + 3 * (o["cp3"] + o["dstart"] + 1): self.readlevel(2)
        for t in range(3): a(f"ds_write_b128 v15, {vr(16+4*t)} offset:{L_OP+1024*t}")
        a("s_waitcnt lgkmcnt(0)")
        self.stamp(7)
        a("s_barrier")
        if o["notail"]: a("s_branch L_done")
        if o["woafter"]:
            a(f"s_cmp_eq_u32 s{sW}, 3")
            a("s_cbranch_scc1 L_noof")
            self.ofinal(172, 173, 174)
            self.stamp(8)
            a("L_noof:")
        a(f"s_cmp_lg_u32 s{sX}, 0")
        a("s_cbranch_scc1 L_done")
        a(f"s_mov_b32 s{sT+10}, s{sW}")
        a("s_branch L_grp0")

    def sec_h123(self):
        a = self.a; o = self.o
        a("L_h123:")
        a(f"s_sub_u32 s{sT+3}, s{sR}, {o['wk0']}")
        a(f"s_cmp_lt_u32 s{sT+3}, 24")
        a(f"s_cselect_b32 s{sT+4}, 1, 0")
        a(f"s_cmp_eq_u32 s{sX}, 0")
        a(f"s_cselect_b32 s{sT+4}, s{sT+4}, 0")
        hw = o["hw"]
        def stage(tag, ptr, nbytes, rstride, base_expr, blkstep, first, last, w2=False):
            a(f"s_cmp_eq_u32 s{sT+4}, 0")
            a(f"s_cbranch_scc1 {tag}_e")
            self.mksrd(srdWt, ptr, nbytes)
            a(f"v_mul_u32_u24 v7, {rstride}, v2")
            a("v_add_u32 v7, v7, v1")
            a(f"s_mul_i32 s{sT+6}, s{sT+3}, {base_expr}")
            a(f"s_add_u32 s{sT+7}, s{sT+5}, {first}")
            if w2:
                a("v_bfe_u32 v9, v0, 2, 1")
                a("v_lshlrev_b32 v9, 11, v9")
                a("v_bfe_u32 v10, v0, 3, 1")
                a("v_lshl_add_u32 v9, v10, 10, v9")
                a("v_lshrrev_b32 v10, 4, v0")
                a("v_lshl_add_u32 v9, v10, 8, v9")
                a("v_and_b32 v10, 3, v0")
                a("v_lshl_add_u32 v9, v10, 6, v9")
            a(f"{tag}:")
            a(f"s_mul_i32 s{sT+8}, s{sT+7}, {blkstep}")
            a(f"s_add_u32 s{sT+8}, s{sT+8}, s{sT+6}")
            for e in range(8):
                if e >= hw: a(f"s_waitcnt vmcnt({hw-1})")
                a(f"buffer_load_dwordx4 {vr(64+4*e)}, v7, {srd(srdWt)}, s{sT+8} offen {o['wpol']}")
                if e < 7: a(f"s_add_u32 s{sT+8}, s{sT+8}, {8*rstride}")
            a(f"s_lshl_b32 s{sT+8}, s{sT+7}, 13")
            a(f"s_add_u32 s{sT+8}, s{sT+8}, {L_W}")
            a(f"v_add_u32 v8, s{sT+8}, v{9 if w2 else 3}")
            a("s_waitcnt vmcnt(0) lgkmcnt(0)")
            self.transpose(64, 128)
            for m in range(8): a(f"ds_write_b128 v8, {vr(128+4*m)} offset:{(m>>2)*4096+(m&3)*16 if w2 else 1024*m}")
            a(f"s_add_u32 s{sT+7}, s{sT+7}, 3")
            a(f"s_cmp_lt_u32 s{sT+7}, {last}")
            a(f"s_cbranch_scc1 {tag}")
            a("s_waitcnt lgkmcnt(0)")
            a(f"{tag}_e:")
        sp = o["w1split"]
        if sp: stage("L_st0", 16, 1966080, 3072, 128, 64 * 3072, 0, sp)
        a("s_barrier")
        stage("L_st1", 16, 1966080, 3072, 128, 64 * 3072, sp, 10)
        self.stamp(4)
        a("s_barrier")
        a("v_mov_b32 v13, 0")
        a(f"ds_read_b32 v16, v13 offset:{L_SM+32}")
        self.read_frags(176)
        a("s_waitcnt lgkmcnt(0)")
        a(f"v_readfirstlane_b32 s{sLOC}, v16")
        a("s_barrier")
        stage("L_st2", 18, 1966080, 1280, 64 * 1280, 128, 0, 10, w2=True)
        if not o["woafter"]: self.ofinal_addr(sT + 5, 8, 9, 10, 11)
        if o["predirty"] and o["local"]:
            self.ldswait("L_vprog1", L_SM + 44, 2, sleep=4)
            a(f"s_cmp_eq_u32 s{sLOC}, 1")
            a("s_cbranch_scc0 L_nopd0")
            a("v_mov_b32 v24, -1")
            a("s_mov_b32 exec_lo, 0x55555555")
            a("s_mov_b32 exec_hi, 0x55555555")
            a(f"buffer_store_dword v24, v10, {srd(srdWS)}, s{sT+9} offen offset:{OBUF}")
            a("s_mov_b64 exec, -1")
            a("L_nopd0:")
        a(f"s_cmp_lg_u32 s{sW}, 6")
        a("s_cbranch_scc1 L_b5")

    def sec_wo(self):
        a = self.a; o = self.o
        a("L_wo:")
        self.mksrd(srdWt, 12, 7864320)
        a(f"s_cmp_ge_u32 s{sR}, 30")
        a(f"s_cselect_b32 s{srdWt+2}, 0, s{srdWt+2}")
        a(f"s_bfe_u32 s{sT+2}, s{sW}, 0x10001")
        a(f"s_mul_i32 s{sT+3}, s{sR}, 26")
        a(f"s_lshr_b32 s{sT+3}, s{sT+3}, 8")
        a(f"s_mul_i32 s{sT+4}, s{sT+3}, 10")
        a(f"s_sub_u32 s{sT+4}, s{sR}, s{sT+4}")
        a(f"s_mul_i32 s{sT+6}, s{sX}, 3")
        a(f"s_add_u32 s{sT+3}, s{sT+3}, s{sT+6}")
        a(f"s_lshl1_add_u32 s{sT+6}, s{sT+3}, s{sT+2}")
        a(f"s_mul_i32 s{sT+6}, s{sT+6}, {128*1280}")
        a(f"s_lshl_b32 s{sT+7}, s{sT+4}, 7")
        a(f"s_add_u32 s{sT+6}, s{sT+6}, s{sT+7}")
        a(f"v_mul_u32_u24 v15, {8*1280}, v2")
        a("v_add_u32 v15, v15, v1")
        a(f"s_lshl_b32 s{sT+7}, s{sT+2}, 13")
        a(f"s_add_u32 s{sT+7}, s{sT+7}, {L_WX}")
        a(f"v_add_u32 v12, s{sT+7}, v3")
        a("v_xor_b32 v7, 0, v3")
        a(f"s_xor_b32 s{sT+7}, s{sT+2}, 1")
        a(f"s_lshl_b32 s{sT+7}, s{sT+7}, 13")
        a(f"s_add_u32 s{sT+7}, s{sT+7}, {L_WX}")
        a(f"v_add_u32 v7, s{sT+7}, v7")
        a(f"s_lshl_b32 s{sT+8}, s{sT+3}, 12")
        a(f"s_lshl_b32 s{sT+7}, s{sT+2}, 11")
        a(f"s_add_u32 s{sT+12}, s{sT+8}, s{sT+7}")
        a(f"s_xor_b32 s{sT+7}, s{sT+7}, 2048")
        a(f"s_add_u32 s{sT+13}, s{sT+8}, s{sT+7}")
        a(f"s_mul_i32 s{sT+7}, s{sT+3}, {PSTR}")
        a(f"s_lshl_b32 s{sT+8}, s{sT+4}, 11")
        a(f"s_add_u32 s{sT+7}, s{sT+7}, s{sT+8}")
        a(f"s_lshl_b32 s{sT+8}, s{sT+2}, 10")
        a(f"s_add_u32 s{sT+7}, s{sT+7}, s{sT+8}")
        a(f"s_add_u32 s{sT+7}, s{sT+7}, {YBUF}")
        a(f"s_mov_b32 s{sT+10}, 7")
        a("v_mov_b32 v10, 0")
        a("v_mov_b32 v11, 1")
        oloads = [(f"buffer_load_dwordx4 {vr(32+4*kb)}, v3, {srd(srdWS)}, s{sT+12+(kb>>1)} offen offset:{OBUF+1024*(kb&1)} {o['pollld']}", 32 + 4 * kb, 4) for kb in range(4)]
        self.oloads = oloads
        def woload(k):
            for e in range(8):
                if e % 4 == 0: a(f"s_add_u32 s{sT+8}, s{sT+6}, {(64*k + e) * 1280}")
                a(f"buffer_load_dwordx4 {vr(64+32*k+4*e)}, v15, {srd(srdWt)}, s{sT+8} offen offset:{(e%4)*1280} {o['wpol']}")
        def woproc(k, gsel, last):
            keepd = [128 + 16 * k + 4 * j for j in range(4)]; give = [216 + 16 * k + 4 * j for j in range(4)]
            dst = keepd + give if gsel == 0 else give + keepd
            gm = range(4, 8) if gsel == 0 else range(4); km = range(4) if gsel == 0 else range(4, 8)
            for j, m in enumerate(gm):
                self.transpose(64 + 32 * k, dst, [m])
                a(f"ds_write_b128 v12, {vr(give[j])} offset:{1024*(4*k+j)}")
            if last:
                a("s_mov_b64 exec, 1")
                a(f"ds_add_u32 v10, v11 offset:{L_SM+60}")
                a("s_mov_b64 exec, -1")
                for l in oloads: a(l[0])
            self.transpose(64 + 32 * k, dst, km)
        ne = o["woearly"]
        a(f"s_cmp_eq_u32 s{sT+2}, 0")
        a("s_cbranch_scc0 L_wo1")
        for gsel in range(2):
            if gsel: a("L_wo1:")
            for k in range(ne):
                woload(k)
                a("s_waitcnt vmcnt(0)")
                woproc(k, gsel, False)
            self.ldswait(f"L_vprog{gsel}x", L_SM + 36, o["ntrig"], sleep=o["wosleep"])
            if o["wothr"]:
                a(f"s_cmp_eq_u32 s{sLOC}, 1")
                a(f"s_cbranch_scc0 L_wgo{gsel}")
                a(f"s_lshl_b32 s{sT+14}, s{sX}, 7")
                a(f"s_add_u32 s{sT+14}, s{sT+14}, {GBUF}")
                a("v_lshlrev_b32 v9, 2, v0")
                if gsel == 0:
                    a(f"s_lshl_b64 exec, 1, s{sR}")
                    a(f"buffer_store_dword v10, v9, {srd(srdWS)}, s{sT+14} offen")
                a("s_mov_b64 exec, 0xffffffff")
                a(f"buffer_load_dword v13, v9, {srd(srdWS)}, s{sT+14} offen sc1")
                a("s_waitcnt vmcnt(0)")
                a("v_cmp_eq_u32 vcc, 0, v13")
                a("s_mov_b64 exec, -1")
                a(f"s_bcnt1_i32_b32 s{sT+15}, vcc_lo")
                a(f"s_cmp_ge_u32 s{sT+15}, {o['wothr']}")
                a(f"s_cbranch_scc1 L_wgo{gsel}")
                a("s_barrier")
                a("s_mov_b64 exec, 0xffffffff")
                a(f"s_mov_b32 s{sCnt}, 64")
                a(f"L_wpl{gsel}:")
                a(f"buffer_load_dword v13, v9, {srd(srdWS)}, s{sT+14} offen sc1")
                a(f"s_sub_u32 s{sCnt}, s{sCnt}, 1")
                a("s_waitcnt vmcnt(0)")
                a(f"s_cbranch_scc1 L_wpx{gsel}")
                a("v_cmp_eq_u32 vcc, 0, v13")
                a(f"s_bcnt1_i32_b32 s{sT+15}, vcc_lo")
                a(f"s_cmp_lt_u32 s{sT+15}, {o['wothr2']}")
                a(f"s_cbranch_scc1 L_wpl{gsel}")
                a(f"L_wpx{gsel}:")
                a("s_mov_b64 exec, -1")
                for k in range(ne, 2): woload(k)
                a(f"s_branch L_wjoin{gsel}")
                a(f"L_wgo{gsel}:")
            for k in range(ne, 2): woload(k)
            a("s_barrier")
            a(f"L_wjoin{gsel}:")
            if o["notail"]: a("s_branch L_done")
            a(f"s_cmp_ge_u32 s{sR}, 30")
            a("s_cbranch_scc1 L_odone")
            for k in range(ne, 2):
                a(f"s_waitcnt vmcnt({8*(1-k)})")
                woproc(k, gsel, k == 1)
            if not gsel: a("s_branch L_wo2")
        a("L_wo2:")
        self.ldswait("L_wx", L_SM + 60, 2)
        self.stamp(6)
        a("s_branch L_oproj")
        a("L_b5:")
        self.stamp(6)
        a("s_barrier")
        if o["notail"]: a("s_branch L_done")
        a(f"s_cmp_eq_u32 s{sW}, 7")
        a(f"s_cselect_b32 s{sT+10}, 4, 7")
        a("s_branch L_odone")
        a("L_oproj:")
        for n in range(8): a(f"ds_read_b128 {vr(64+4*n)}, v7 offset:{1024*n}")
        self.mpoll("L_po", oloads, 4, issued=True)
        a("s_waitcnt lgkmcnt(0)")
        if o["stamps"]: self.stamp(5)
        for j in range(4):
            for kb in range(4):
                c = "0" if kb == 0 else vr(96 + 4 * j)
                B = (128 if kb < 2 else 64) + 16 * (kb & 1) + 4 * j
                a(f"v_mfma_f32_16x16x32_bf16 {vr(96+4*j)}, {vr(32+4*kb)}, {vr(B)}, {c}")
            if j >= 2: self.combineB([96 + 4 * (j - 2)], [48 + j - 2])
        self.combineB([104, 108], [50, 51])
        a(f"buffer_store_dwordx4 v[48:51], v3, {srd(srdWS)}, s{sT+7} offen sc1")
        self.stamp(9)
        a("L_odone:")
        a(f"s_cmp_lg_u32 s{sX}, 0")
        a("s_cbranch_scc1 L_done")

    def sec_tail(self):
        a = self.a; o = self.o
        wk0 = o["wk0"]
        a("L_grp0:")
        if o["b5b"]:
            a(f"s_and_b32 s{sT}, s{sW}, 5")
            a(f"s_cmp_eq_u32 s{sT}, 4")
            a("s_cbranch_scc0 L_prep")
            a("s_barrier")
            a(f"s_mov_b32 s{sT+10}, 8")
            a("L_prep:")
        a(f"s_sub_u32 s{sT+11}, s{sR}, {wk0}")
        a(f"s_lshr_b32 s{sT+1}, s{sW}, 2")
        a(f"s_and_b32 s{sT+2}, s{sW}, 3")
        a(f"s_lshl_b32 s{sT+3}, s{sT+1}, 1")
        a(f"s_xor_b32 s{sT+2}, s{sT+2}, s{sT+3}")
        a(f"s_mul_i32 s{sT+16}, s{sT+2}, 3")
        a(f"s_cmp_eq_u32 s{sT+2}, 3")
        a(f"s_cselect_b32 s{sT+16}, 8, s{sT+16}")
        a(f"s_cmp_lt_u32 s{sT+2}, 2")
        a(f"s_cselect_b32 s{sT+17}, 1, 0")
        a(f"s_lshl_b32 s{sT+3}, s{sT+16}, 13")
        a(f"s_lshl_b32 s{sT+4}, s{sT+1}, 12")
        a(f"s_add_u32 s{sT+3}, s{sT+3}, s{sT+4}")
        a(f"s_add_u32 s{sT+3}, s{sT+3}, {L_W}")
        a(f"v_add_u32 v4, s{sT+3}, v3")
        for k in range(2):
            for u in range(4): a(f"ds_read_b128 {vr(216+16*k+4*u)}, v4 offset:{8192*k+1024*u}")
        a(f"s_cmp_eq_u32 s{sT+17}, 0")
        a("s_cbranch_scc1 L_no3a")
        for u in range(4): a(f"ds_read_b128 {vr(160+4*u)}, v4 offset:{16384+1024*u}")
        a("L_no3a:")
        a(f"s_mul_i32 s{sT+2}, s{sT+11}, {PSTR}")
        a(f"s_lshl_b32 s{sT+16}, s{sT+16}, 11")
        a(f"s_add_u32 s{sT+16}, s{sT+16}, s{sT+2}")
        a(f"s_lshl_b32 s{sT+1}, s{sT+1}, 10")
        a(f"s_add_u32 s{sT+16}, s{sT+16}, s{sT+1}")
        a(f"s_add_u32 s{sT+16}, s{sT+16}, {FBUF}")
        a(f"s_add_u32 s{sT+8}, s{sT+16}, 4096")
        self.mksrd(srdOUT, 20, 10240)
        a("v_lshrrev_b32 v6, 3, v0")
        a(f"v_mul_u32_u24 v15, {PSTR}, v6")
        a("v_add_u32 v15, v15, v1")
        a(f"s_mul_i32 s{sT+9}, s{sW}, 2560")
        a(f"s_add_u32 s{sT+9}, s{sT+9}, {HBUF}")
        a("v_lshlrev_b32 v8, 3, v0")
        a("v_bfe_u32 v10, v0, 2, 1")
        a("v_bfe_u32 v11, v0, 3, 1")
        a("v_lshl_add_u32 v10, v10, 1, v11")
        a(f"v_xor_b32 v11, s{sW}, v10")
        a("v_lshlrev_b32 v11, 5, v11")
        a("v_lshl_add_u32 v10, v10, 8, v11")
        a("v_and_b32 v11, 3, v0")
        a("v_lshl_add_u32 v10, v11, 3, v10")
        a("v_lshrrev_b32 v11, 4, v0")
        a("v_lshl_add_u32 v10, v11, 10, v10")
        a("v_bfe_u32 v11, v0, 3, 1")
        a("v_bfe_u32 v16, v0, 4, 1")
        a("v_lshl_add_u32 v11, v11, 1, v16")
        a(f"v_xor_b32 v16, s{sW}, v11")
        a("v_lshlrev_b32 v16, 5, v16")
        a("v_lshl_add_u32 v11, v11, 8, v16")
        a("v_and_b32 v16, 7, v0")
        a("v_lshl_add_u32 v11, v16, 2, v11")
        a("v_lshrrev_b32 v16, 5, v0")
        a("v_lshl_add_u32 v11, v16, 10, v11")
        a("v_lshrrev_b32 v5, 5, v0")
        a("v_bfe_u32 v16, v0, 3, 1")
        a("v_lshl_add_u32 v5, v5, 1, v16")
        a("v_and_b32 v16, 7, v0")
        a(f"v_mul_u32_u24 v7, {SRS}, v16")
        a("v_and_b32 v18, 48, v0")
        a("v_add_u32 v7, v7, v18")
        for k in range(16): a(f"v_mov_b32 v{120+k}, 0")
        a("v_xor_b32 v16, v16, v5")
        a("v_lshlrev_b32 v16, 5, v16")
        a("v_lshl_add_u32 v5, v5, 8, v16")
        a("v_and_b32 v16, 16, v0")
        a("v_add_u32 v5, v5, v16")
        a("v_bfe_u32 v16, v0, 4, 1")
        a("v_lshrrev_b32 v17, 5, v0")
        a("v_lshlrev_b32 v16, 2, v16")
        a("v_lshl_add_u32 v16, v17, 1, v16")
        a("v_bfe_u32 v17, v0, 3, 1")
        a("v_add_u32 v16, v16, v17")
        a(f"v_mul_u32_u24 v16, {SRS}, v16")
        a("v_lshrrev_b32 v17, 3, v1")
        a(f"s_lshl_b32 s{sT+1}, s{sW}, 4")
        a(f"v_add3_u32 v16, v16, v17, s{sT+1}")
        a(f"s_mul_i32 s{sT}, s{sR}, 5")
        a(f"s_add_u32 s{sT}, s{sT}, s{sT+10}")
        a(f"s_lshr_b32 s{sT+1}, s{sT}, 3")
        a(f"s_and_b32 s{sT+2}, s{sT}, 7")
        self.swapbits(sT + 3, sT + 2, sT + 4)
        a(f"s_lshl_b32 s{sT+12}, s{sT}, 7")
        a(f"s_add_u32 s{sT+12}, s{sT+12}, {YBUF}")
        a(f"s_add_u32 s{sT+13}, s{sT+12}, {8*PSTR}")
        a(f"s_add_u32 s{sT+14}, s{sT+12}, {16*PSTR}")
        a(f"s_mul_i32 s{sT+4}, s{sT+3}, 1280")
        a(f"s_lshr_b32 s{sT+5}, s{sT+1}, 1")
        a(f"s_lshl_b32 s{sT+5}, s{sT+5}, 7")
        a(f"s_add_u32 s{sT+4}, s{sT+4}, s{sT+5}")
        a(f"s_and_b32 s{sT+5}, s{sT+1}, 1")
        a(f"s_lshl3_add_u32 s{sT+4}, s{sT+5}, s{sT+4}")
        a("v_lshrrev_b32 v9, 4, v0")
        a("v_lshl_add_u32 v12, v9, 1, v1")
        a(f"v_add_u32 v12, s{sT+4}, v12")
        a("v_lshlrev_b32 v9, 5, v9")
        a("v_lshrrev_b32 v17, 2, v1")
        a("v_add_u32 v9, v9, v17")
        a(f"s_and_b32 s{sT+4}, s{sT}, 1")
        a(f"s_bfe_u32 s{sT+6}, s{sT}, 0x20001")
        a(f"s_lshl2_add_u32 s{sT+4}, s{sT+4}, s{sT+6}")
        a(f"s_lshr_b32 s{sT+6}, s{sT+1}, 1")
        a(f"s_lshl_b32 s{sT+6}, s{sT+6}, 7")
        a(f"s_lshl4_add_u32 s{sT+6}, s{sT+4}, s{sT+6}")
        a(f"s_lshl3_add_u32 s{sT+6}, s{sT+5}, s{sT+6}")
        a("v_and_b32 v17, 7, v0")
        a("v_mul_u32_u24 v18, 1280, v17")
        a("v_lshrrev_b32 v19, 4, v0")
        a("v_lshl_add_u32 v18, v19, 1, v18")
        a(f"v_add_u32 v18, s{sT+6}, v18")
        a(f"s_lshl_b32 s{sT+6}, s{sT+1}, 7")
        a(f"s_lshl2_add_u32 s{sT+6}, s{sT+4}, s{sT+6}")
        a(f"s_add_u32 s{sT+6}, s{sT+6}, {HBUF}")
        a("v_mul_u32_u24 v17, 2560, v17")
        a("v_lshl_add_u32 v19, v19, 5, v17")
        a(f"v_add_u32 v19, s{sT+6}, v19")
        a(f"s_mul_i32 s{sT+15}, s{sT+3}, 2560")
        a(f"s_lshl_b32 s{sT+5}, s{sT+1}, 7")
        a(f"s_add_u32 s{sT+15}, s{sT+15}, s{sT+5}")
        a(f"s_add_u32 s{sT+15}, s{sT+15}, {HBUF}")
        if o["predirty"] and o["local"]:
            a(f"s_cmp_eq_u32 s{sLOC}, 1")
            a("s_cbranch_scc0 L_nopd2")
            for k in range(4): a(f"v_mov_b32 v{20+k}, -1")
            a(f"s_cmp_ge_u32 s{sT+11}, 24")
            a("s_cbranch_scc1 L_nopd1")
            a(f"buffer_store_dwordx4 v[20:23], v3, {srd(srdWS)}, s{sT+16} offen")
            a(f"buffer_store_dwordx4 v[20:23], v3, {srd(srdWS)}, s{sT+16} offen offset:2048")
            a(f"s_cmp_eq_u32 s{sT+17}, 0")
            a("s_cbranch_scc1 L_nopd1")
            a(f"buffer_store_dwordx4 v[20:23], v3, {srd(srdWS)}, s{sT+8} offen")
            a("L_nopd1:")
            a(f"s_cmp_ge_u32 s{sT+10}, 5")
            a("s_cbranch_scc1 L_nopd2")
            a("s_mov_b64 exec, 0xff")
            a(f"buffer_store_dwordx4 v[20:23], v3, {srd(srdWS)}, s{sT+15} offen")
            a("s_mov_b64 exec, -1")
            a("L_nopd2:")
        if "h" in o["preread"]:
            a(f"buffer_load_dwordx4 v[40:43], v3, {srd(srdWS)}, s{sT+9} offen {o['prepol']}")
            a(f"buffer_load_dwordx4 v[44:47], v3, {srd(srdWS)}, s{sT+9} offen offset:1024 {o['prepol']}")
            a(f"buffer_load_dwordx2 v[48:49], v8, {srd(srdWS)}, s{sT+9} offen offset:2048 {o['prepol']}")
        a(f"s_cmp_ge_u32 s{sT+10}, 5")
        a("s_cbranch_scc1 L_nored0")
        if "f" in o["preread"]:
            a(f"v_add_u32 v17, {FBUF-YBUF}, v15")
            for i in range(3): a(f"buffer_load_dwordx4 {vr(76+4*i)}, v17, {srd(srdWS)}, s{sT+12+i} offen {o['prepol']}")
        a(f"buffer_load_ushort v13, v12, {srd(srdX)}, 0 offen")
        if o["b5b"]: a("s_barrier")
        self.mpoll("L_py", [(f"buffer_load_dwordx4 {vr(64+4*i)}, v15, {srd(srdWS)}, s{sT+12+i} offen sc1", 64 + 4 * i, 4) for i in range(3)], 4)
        self.stamp(10)
        a("v_lshlrev_b32 v13, 16, v13")
        self.reduce24(64, 24)
        a("v_cvt_pk_bf16_f32 v24, 0, v24")
        a("s_mov_b32 exec_lo, 0x00ff00ff")
        a("s_mov_b32 exec_hi, 0x00ff00ff")
        a("v_add_f32 v24, v13, v24")
        a("v_cvt_pk_bf16_f32 v24, 0, v24")
        self.pub("L_pubh", [f"buffer_store_dword v24, v9, {srd(srdWS)}, s{sT+15} offen"])
        a("s_mov_b64 exec, -1")
        for i in range(3): a(f"s_add_u32 s{sT+12+i}, s{sT+12+i}, {FBUF-YBUF}")
        a("L_nored1:")
        if o["b5b"]:
            self.cold += ["L_nored0:", f"s_cmp_eq_u32 s{sT+10}, 8", "s_cbranch_scc1 L_nored1", "s_barrier", "s_branch L_nored1"]
        else:
            a("L_nored0:")
        a(f"s_cmp_ge_u32 s{sT+11}, 24")
        a("s_cbranch_scc1 L_idle")
        pl = o["pollld"]
        keep = self.L; self.L = []
        a("L_idle:")
        a(f"s_cmp_ge_u32 s{sT+10}, 5")
        a("s_cbranch_scc1 L_done")
        self.poll("L_ph2", [f"buffer_load_dword v14, v19, {srd(srdWS)}, 0 offen {pl}"], None, None, cmp="v_cmp_eq_u32 vcc, -1, v14")
        if o["isleep"]: a(f"s_sleep {o['isleep']}")
        a("s_branch L_noffn")
        self.cold += self.L; self.L = keep
        if o["b5c"]: a("s_barrier")
        self.mpoll("L_ph", [(f"buffer_load_dwordx4 v[40:43], v3, {srd(srdWS)}, s{sT+9} offen {pl}", 40, 4),
                            (f"buffer_load_dwordx4 v[44:47], v3, {srd(srdWS)}, s{sT+9} offen offset:1024 {pl}", 44, 4),
                            (f"buffer_load_dwordx2 v[48:49], v8, {srd(srdWS)}, s{sT+9} offen offset:2048 {pl}", 48, 2)], 4)
        self.stamp(11)
        self.layernorm()
        if o["fine"]: self.stamp(1)
        a(f"ds_write_b64 v10, v[32:33] offset:{L_XN}")
        a(f"ds_write_b64 v10, v[34:35] offset:{L_XN+4096}")
        a(f"ds_write_b32 v11, v36 offset:{L_XN+8192}")
        a("s_waitcnt lgkmcnt(0)")
        a("s_barrier")
        if o["fine"]: self.stamp(2)
        for kb in range(10): a(f"ds_read_b128 {vr(76+4*kb)}, v5 offset:{L_XN+1024*kb}")
        a(f"buffer_load_dword v14, v19, {srd(srdWS)}, 0 offen {pl}")
        for kb in range(10):
            a(f"s_waitcnt lgkmcnt({9-kb})")
            c = "0" if kb == 0 else "v[116:119]"
            a(f"v_mfma_f32_16x16x32_bf16 v[116:119], {vr(76+4*kb)}, {vr(176+4*kb)}, {c}")
        if o["fine"]: self.stamp(3)
        self.combineB([116], [136])
        a("v_cvt_pk_bf16_f32 v136, 0, v136")
        a(f"v_mul_f32 v137, {hx(f2u(-1.4426950408889634))}, v136")
        a("v_exp_f32 v137, v137")
        a("v_add_f32 v137, 1.0, v137")
        a("v_rcp_f32 v137, v137")
        a("v_mul_f32 v136, v136, v137")
        a("v_cvt_pk_bf16_f32 v136, v136, v136")
        a(f"ds_write_b16 v16, v136 offset:{L_SA}")
        a("s_mov_b32 exec_lo, 0x00ff00ff")
        a("s_mov_b32 exec_hi, 0x00ff00ff")
        a("s_waitcnt lgkmcnt(0)")
        if o["fine"]: self.stamp(4)
        a("s_barrier")
        if o["fine"]: self.stamp(5)
        a(f"ds_read_b128 v[120:123], v7 offset:{L_SA}")
        a(f"ds_read_b128 v[124:127], v7 offset:{L_SA+64}")
        a("s_not_b64 exec, exec")
        a(f"ds_read_b128 v[128:131], v7 offset:{L_SA}")
        a(f"ds_read_b128 v[132:135], v7 offset:{L_SA+64}")
        a("s_mov_b64 exec, -1")
        def chain(acc, fr, wait=False):
            for n in range(4):
                if wait: a(f"s_waitcnt lgkmcnt({3-n})")
                a(f"v_mfma_f32_16x16x32_bf16 {vr(acc)}, {vr(fr+4*n)}, {vr(120+4*n)}, {'0' if n == 0 else vr(acc)}")
        chain(76, 216, True)
        chain(80, 232)
        a(f"s_cmp_eq_u32 s{sT+17}, 0")
        a("s_cbranch_scc1 L_no3b")
        chain(84, 160)
        self.pub("L_pubi", [f"buffer_store_dwordx4 v[76:79], v3, {srd(srdWS)}, s{sT+16} offen",
                            f"buffer_store_dwordx4 v[80:83], v3, {srd(srdWS)}, s{sT+16} offen offset:2048",
                            f"buffer_store_dwordx4 v[84:87], v3, {srd(srdWS)}, s{sT+8} offen"])
        a("s_branch L_no3c")
        a("L_no3b:")
        self.pub("L_pubf", [f"buffer_store_dwordx4 v[76:79], v3, {srd(srdWS)}, s{sT+16} offen",
                            f"buffer_store_dwordx4 v[80:83], v3, {srd(srdWS)}, s{sT+16} offen offset:2048"])
        a("L_no3c:")
        if o["fine"]: self.stamp(15)
        self.stamp(12)
        if o["wbl2"]:
            a(f"s_cmp_lg_u32 s{sW}, 6")
            a("s_cbranch_scc1 L_noffn")
            a(f"s_cmp_ge_u32 s{sT+11}, {o['wbl2']}")
            a("s_cbranch_scc1 L_noffn")
            a("s_waitcnt vmcnt(0)")
            a("buffer_wbl2 sc1")
        a("L_noffn:")
        a(f"s_cmp_ge_u32 s{sT+10}, 5")
        a("s_cbranch_scc1 L_done")
        self.mpoll("L_pf", [(f"buffer_load_dwordx4 {vr(64+4*i)}, v15, {srd(srdWS)}, s{sT+12+i} offen {pl}", 64 + 4 * i, 4) for i in range(3)], 4)
        self.stamp(13)
        self.reduce24(64, 24)
        a("v_cvt_pk_bf16_f32 v24, 0, v24")
        a("s_mov_b32 exec_lo, 0x00ff00ff")
        a("s_mov_b32 exec_hi, 0x00ff00ff")
        a("v_add_f32 v14, v14, v24")
        a("v_cvt_pk_bf16_f32 v14, v14, v14")
        a(f"buffer_store_short v14, v18, {srd(srdOUT)}, 0 offen")
        a("L_done:")
        if o["hold"]:
            a("L_hold:")
            a(f"s_memrealtime s[{sT}:{sT+1}]")
            a("s_waitcnt lgkmcnt(0)")
            a(f"s_sub_u32 s{sT}, s{sT}, s{sST}")
            a(f"s_cmp_lt_u32 s{sT}, {int(o['hold']*100)}")
            a("s_cbranch_scc1 L_hold")
        if o["stamps"]:
            a("s_mov_b64 exec, -1")
            a("s_waitcnt vmcnt(0)")
            self.stamp(14)
            a(f"s_lshl3_add_u32 s{sT}, s{sR}, s{sX}")
            a(f"s_lshl3_add_u32 s{sT}, s{sT}, s{sW}")
            a(f"s_lshl_b32 s{sT}, s{sT}, 6")
            a(f"s_add_u32 s{sT}, s{sT}, {STAMP}")
            for k in range(16): a(f"v_mov_b32 v{16+k}, s{sST+k}")
            a("v_mov_b32 v4, 0")
            a("s_mov_b64 exec, 1")
            for k in range(4): a(f"buffer_store_dwordx4 {vr(16+4*k)}, v4, {srd(srdWS)}, s{sT} offen offset:{16*k}")
        a("L_end:")
        a("s_endpgm")

    def gen(self):
        a = self.a; o = self.o
        self.sec_start()
        self.sec_h0q()
        self.sec_stream()
        self.sec_h123()
        self.sec_wo()
        self.sec_tail()
        for t in self.cold: a(t)
        a("L_last:")
        a("s_endpgm")
        body, nn = fix_hazards(self.L)
        out = [f"; @launch grid=(256,1,1) block=(512,1,1) lds={LDS_BYTES}",
               '.amdgcn_target "amdgcn-amd-amdhsa--gfx950"', ".text", f".globl {NAME}_kernel"]
        if o["align"]: out += [".p2align 12", ".fill 832, 4, 0xbf810000"]
        out += [".p2align 8", f".type {NAME}_kernel,@function"]
        out += [s if s.endswith(":") else "    " + s for s in body]
        out += ['.section .rodata,"a"', ".p2align 6", f".amdhsa_kernel {NAME}_kernel",
                "  .amdhsa_next_free_vgpr 256", "  .amdhsa_next_free_sgpr 102", "  .amdhsa_accum_offset 256",
                "  .amdhsa_group_segment_fixed_size 0", "  .amdhsa_kernarg_size 88", "  .amdhsa_user_sgpr_count 2",
                "  .amdhsa_user_sgpr_kernarg_segment_ptr 1", "  .amdhsa_system_sgpr_workgroup_id_x 1",
                "  .amdhsa_float_denorm_mode_32 3", ".end_amdhsa_kernel"]
        return "\n".join(out) + "\n"

def gen(**o): return G(**o).gen()

if __name__ == "__main__":
    kw = {}
    for s in sys.argv[2:]:
        k, v = s.split("=", 1)
        try: v = eval(v)
        except Exception: pass
        kw[k] = v
    open(sys.argv[1], "w").write(gen(**kw))
```

```python
import struct, sys
from asmlib import fix_hazards

NAME = "sequential_preLN__sliding_block_cached__dense_activation_silu__decode"
f2u = lambda x: struct.unpack("<I", struct.pack("<f", x))[0]
hx = lambda x: "0x%08x" % (x & 0xffffffff)

OBUF = 0
PSTR = 20480 + 128
YBUF = OBUF + 96 * 1024
HBUF = YBUF + 24 * PSTR
FBUF = HBUF + 8 * 2560
KBUF = FBUF + 24 * PSTR
GBUF = KBUF + 8 * 1024
TBUF = GBUF + 1024
QBUF = TBUF + 1024
CLR_END = QBUF + 8 * 24 * 2048
assert CLR_END <= 256 * 6144
WS_USED = CLR_END
STAMP = 2 << 20
XRS = 1296
L_XN = 0
L_Q = L_XN + 8 * XRS
L_SM = L_Q + 384
L_RK = L_SM + 64
L_OP = L_RK + 32
SRS = 144
L_SA = L_OP + 4 * 3072
L_WX = L_SA + 8 * SRS
L_W = L_WX + 16384
LDS_BYTES = L_W + 81920

sX, sR, sH, sB, sW = 26, 27, 28, 29, 30
srdK, srdV, srdX, srdWt, srdWS, srdDBG, srdOUT = 32, 36, 40, 44, 48, 52, 56
sPlo, sPhi, sLOC, sPat, sOff, sCnt = 80, 81, 82, 83, 84, 85
sLvl, sBase, sAlt = 3, 31, 2
sGi = 81
sT = 60
sM = 4
sST = 86
SPIN = 100000

def srd(n): return f"s[{n}:{n+3}]"
def vr(a, n=4): return f"v[{a}:{a+n-1}]" if n > 1 else f"v{a}"

DEF = dict(W=4, Wk=6, W0=3, rot=11, burst3=6, burst4=3, ring=48, stamps=False, local=True, pollld="sc1",
           hw=4, wk0=8, kvpol="nt", wpol="nt", w1split=3, fine=False, fine0=False, notail=False, hold=0,
           wolate=32, stpol="", prio=3, duty=[(6, 2, 12, 8), (6, 6, 12, 12)], dyn=[(16, 20, 2)],
           lvl0=(1, 0, 2, 1), lvl1=(1, 1, 2, 2), cp3=16, dstart=2, d0=3, n1=12, align=True, wbl2=0, b5b=True, csleep=0, qsleep=0, lite=False, mpoll=True, predirty=False, preread="hF", prepol="", pd={}, b5c=True, isleep=0, Wl=(4, 5, 6, 7), Wend=None, endfrom=168, step=(1, 1, 1), glob=None, woafter=True, ntrig=4, wosleep=2, woearly=1, wothr=0, wothr2=24, rot3=None, gwait=False, rotmem=False, rot4=(4, 1, 4, 0), krows=8, skew=None, wpart=None, gmul=1, oacc=True, oearly=8, cps=[11, 16, 21, 26], cpk=[26], xshift=0, g0bias=4, ypre=False, yloc=True, f2il=True, nclr=6)

class G:
    def __init__(self, **o):
        self.o = dict(DEF); assert set(o) <= set(DEF), set(o) - set(DEF)
        self.o.update(o)
        self.L = []; self.cold = []; self.nlab = 0

    def a(self, s): self.L.append(s)

    def stamp(self, k):
        if self.o["stamps"] and (not self.o["lite"] or k in (7, 14)):
            self.a(f"s_memrealtime s[{sT+18}:{sT+19}]")
            self.a("s_waitcnt lgkmcnt(0)")
            self.a(f"s_mov_b32 s{sST+k}, s{sT+18}")

    def stamp_init(self):
        if self.o["stamps"] and not self.o["lite"]:
            self.a(f"s_mov_b32 s{sST+1}, 0")
            for k in range(2, 16, 2): self.a(f"s_mov_b64 s[{sST+k}:{sST+k+1}], 0")

    def mksrd(self, d, base, nbytes, off=None):
        a = self.a
        if off is None:
            a(f"s_mov_b64 s[{d}:{d+1}], s[{base}:{base+1}]")
        else:
            a(f"s_add_u32 s{d}, s{base}, {off}"); a(f"s_addc_u32 s{d+1}, s{base+1}, 0")
        a(f"s_mov_b32 s{d+2}, {nbytes}"); a(f"s_mov_b32 s{d+3}, 0x20000")

    def swapbits(self, d, x, t):
        a = self.a
        a(f"s_and_b32 s{d}, s{x}, 1")
        a(f"s_and_b32 s{t}, s{x}, 2")
        a(f"s_lshl1_add_u32 s{d}, s{t}, s{d}")
        a(f"s_lshr_b32 s{t}, s{x}, 1")
        a(f"s_and_b32 s{t}, s{t}, 2")
        a(f"s_add_u32 s{d}, s{d}, s{t}")

    def red_low3(self, op, v):
        a = self.a
        a(f"{op}_dpp v{v}, v{v}, v{v} quad_perm:[1,0,3,2] row_mask:0xf bank_mask:0xf")
        a(f"{op}_dpp v{v}, v{v}, v{v} quad_perm:[2,3,0,1] row_mask:0xf bank_mask:0xf")
        a(f"{op}_dpp v{v}, v{v}, v{v} row_half_mirror row_mask:0xf bank_mask:0xf")

    def red_high3(self, op, v, t):
        a = self.a
        a(f"{op}_dpp v{v}, v{v}, v{v} row_ror:8 row_mask:0xf bank_mask:0xf")
        a(f"v_mov_b32 v{t}, v{v}")
        a(f"v_permlane16_swap_b32 v{v}, v{t}")
        a(f"{op} v{v}, v{v}, v{t}")
        a(f"v_mov_b32 v{t}, v{v}")
        a(f"v_permlane32_swap_b32 v{v}, v{t}")
        a(f"{op} v{v}, v{v}, v{t}")

    def layernorm(self):
        a = self.a
        z = list(range(40, 50)); d = list(range(50, 60))
        a("v_add_f32 v60, v40, v41"); a("v_add_f32 v61, v42, v43"); a("v_add_f32 v62, v44, v45"); a("v_add_f32 v63, v46, v47")
        a("v_add_f32 v60, v60, v61"); a("v_add_f32 v62, v62, v63"); a("v_add_f32 v61, v48, v49")
        a("v_add_f32 v60, v60, v62"); a("v_add_f32 v60, v60, v61")
        self.red_low3("v_add_f32", 60); self.red_high3("v_add_f32", 60, 61)
        a(f"v_mul_f32 v63, {hx(f2u(1.0/640))}, v60")
        a("v_cvt_pk_bf16_f32 v60, 0, v63")
        for i in range(10): a(f"v_sub_f32 v{d[i]}, v{z[i]}, v60")
        a("v_mul_f32 v61, v50, v50"); a("v_mul_f32 v62, v51, v51")
        for i in range(2, 10, 2):
            a(f"v_fmac_f32 v61, v{d[i]}, v{d[i]}"); a(f"v_fmac_f32 v62, v{d[i+1]}, v{d[i+1]}")
        a("v_add_f32 v61, v61, v62")
        fill = ["v_sub_f32 v63, v63, v60", "v_mul_f32 v63, v63, v63"]
        for i in range(10): fill.append(f"v_cvt_pk_bf16_f32 v{d[i]}, 0, v{d[i]}")
        chain = ["v_add_f32_dpp v61, v61, v61 quad_perm:[1,0,3,2] row_mask:0xf bank_mask:0xf",
                 "v_add_f32_dpp v61, v61, v61 quad_perm:[2,3,0,1] row_mask:0xf bank_mask:0xf",
                 "v_add_f32_dpp v61, v61, v61 row_half_mirror row_mask:0xf bank_mask:0xf",
                 "v_add_f32_dpp v61, v61, v61 row_ror:8 row_mask:0xf bank_mask:0xf\nv_mov_b32 v62, v61",
                 "v_permlane16_swap_b32 v61, v62\nv_add_f32 v61, v61, v62\nv_mov_b32 v62, v61",
                 "v_permlane32_swap_b32 v61, v62\nv_add_f32 v61, v61, v62\n" + f"v_mul_f32 v61, {hx(f2u(1.0/640))}, v61\nv_sub_f32 v61, v61, v63\nv_max_f32 v61, 0, v61\n"
                 "v_cvt_pk_bf16_f32 v61, 0, v61\n"
                 f"v_add_f32 v61, {hx(f2u(1e-5))}, v61\nv_cvt_pk_bf16_f32 v61, 0, v61\nv_sqrt_f32 v61, v61",
                 "v_cvt_pk_bf16_f32 v61, 0, v61\nv_rcp_f32 v61, v61"]
        for c in chain:
            for _ in range(2):
                if fill: a(fill.pop(0))
            for s in c.split("\n"): a(s)
        for s in fill: a(s)
        for i in range(10): a(f"v_mul_f32 v{d[i]}, v{d[i]}, v61")
        for i in range(5): a(f"v_cvt_pk_bf16_f32 v{32+i}, v{d[2*i]}, v{d[2*i+1]}")

    def transpose(self, raw, dst, ms=range(8)):
        if isinstance(dst, int): dst = [dst + 4 * m for m in range(8)]
        for m in ms:
            for d in range(4):
                self.a(f"v_perm_b32 v{dst[m]+d}, v{raw+4*(2*d+1)+(m>>1)}, v{raw+4*(2*d)+(m>>1)}, s{sPhi if m & 1 else sPlo}")

    def combineB(self, accs, dsts):
        a = self.a
        for A in accs:
            a(f"v_permlane32_swap_b32 v{A}, v{A+2}")
            a(f"v_permlane32_swap_b32 v{A+1}, v{A+3}")
        for A, D in zip(accs, dsts):
            a(f"v_add_f32_dpp v{D}, v{A+2}, v{A} row_ror:8 row_mask:0xf bank_mask:0x3")
        for A, D in zip(accs, dsts):
            a(f"v_add_f32_dpp v{D}, v{A+1}, v{A+3} row_ror:8 row_mask:0xf bank_mask:0xc")

    def anyclear(self, regs, tmp):
        a = self.a
        regs = list(regs)
        a(f"v_max3_u32 v{tmp}, v{regs[0]}, v{regs[1]}, v{regs[2]}")
        regs = regs[3:]
        while len(regs) >= 2:
            a(f"v_max3_u32 v{tmp}, v{tmp}, v{regs[0]}, v{regs[1]}"); regs = regs[2:]
        if regs: a(f"v_max_u32 v{tmp}, v{tmp}, v{regs[0]}")
        a(f"v_cmp_eq_u32 vcc, -1, v{tmp}")

    def poll(self, name, loads, regs, tmp, first=None, cmp=None):
        a = self.a
        a(f"s_mov_b32 s{sCnt}, {SPIN}")
        if first:
            for s in first: a(s)
            a(f"s_branch {name}_c")
        a(f"{name}:")
        for s in loads: a(s)
        if first: a(f"{name}_c:")
        a(f"s_sub_u32 s{sCnt}, s{sCnt}, 1")
        a("s_waitcnt vmcnt(0)")
        a(f"s_cbranch_scc1 {name}_x")
        if cmp: a(cmp)
        else: self.anyclear(regs, tmp)
        a(f"s_cbranch_vccnz {name}")
        a(f"{name}_x:")

    def mpoll(self, name, loads, tmp, issued=False):
        a = self.a
        if not self.o["mpoll"]:
            return self.poll(name, [l[0] for l in loads], [r for _, f, n in loads for r in range(f, f + n)], tmp)
        M = [sM + 2 * k for k in range(len(loads))]
        depth, gap = self.o["pd"].get(name, (1, 0))
        nl = len(loads)
        a(f"s_mov_b32 s{sCnt}, {SPIN}")
        for k in range(0 if issued else depth):
            if k and gap: a(f"s_sleep {gap}")
            for l in loads: a(l[0])
        a(f"s_branch {name}_c")
        a(f"{name}:")
        for m, l in zip(M, loads):
            a(f"s_mov_b64 exec, s[{m}:{m+1}]")
            a(l[0])
        a("s_mov_b64 exec, -1")
        a(f"{name}_c:")
        a(f"s_sub_u32 s{sCnt}, s{sCnt}, 1")
        a(f"s_cbranch_scc1 {name}_t")
        for k, (m, (_, f, n)) in enumerate(zip(M, loads)):
            a(f"s_waitcnt vmcnt({depth*nl-1-k})")
            if n == 4:
                a(f"v_max3_u32 v{tmp}, v{f}, v{f+1}, v{f+2}")
                a(f"v_max_u32 v{tmp}, v{tmp}, v{f+3}")
            elif n == 2:
                a(f"v_max_u32 v{tmp}, v{f}, v{f+1}")
            a(f"v_cmp_eq_u32 s[{m}:{m+1}], -1, v{tmp if n > 1 else f}")
        a(f"s_or_b64 vcc, s[{M[0]}:{M[0]+1}], s[{M[1]}:{M[1]+1}]")
        for m in M[2:]: a(f"s_or_b64 vcc, vcc, s[{m}:{m+1}]")
        a(f"s_cbranch_scc1 {name}")
        a(f"{name}_x:")
        self.cold += [f"{name}_t:", "s_waitcnt vmcnt(0)", f"s_branch {name}_x"]

    def ldswait(self, name, off, n, sleep=0):
        a = self.a
        a("v_mov_b32 v13, 0")
        a(f"s_mov_b32 s{sCnt}, {SPIN*16}")
        a(f"{name}:")
        if sleep: a(f"s_sleep {sleep}")
        a(f"ds_read_b32 v14, v13 offset:{off}")
        a(f"s_sub_u32 s{sCnt}, s{sCnt}, 1")
        a("s_waitcnt lgkmcnt(0)")
        a(f"s_cbranch_scc1 {name}_x")
        a(f"v_cmp_gt_u32 vcc, {n}, v14")
        a(f"s_cbranch_vccnz {name}")
        a(f"{name}_x:")

    def pub(self, name, stores):
        a = self.a
        if not self.o["local"]:
            for s in stores: a(s + " sc1")
            return
        a(f"s_cmp_eq_u32 s{sLOC}, 1")
        a(f"s_cbranch_scc0 {name}_g")
        for s in stores: a((s + " " + self.o["stpol"]).rstrip())
        a(f"{name}_e:")
        self.cold += [f"{name}_g:"] + [s + " sc1" for s in stores] + [f"s_branch {name}_e"]

    def reduce24(self, y, z):
        a = self.a
        for rr in range(4): a(f"v_add_f32 v{z+rr}, v{y+rr}, v{y+4+rr}")
        for rr in range(4): a(f"v_add_f32 v{z+rr}, v{z+rr}, v{y+8+rr}")
        a(f"v_permlane32_swap_b32 v{z}, v{z+2}")
        a(f"v_permlane32_swap_b32 v{z+1}, v{z+3}")
        a(f"v_add_f32 v{z}, v{z}, v{z+2}")
        a(f"v_add_f32 v{z+1}, v{z+1}, v{z+3}")
        a(f"v_permlane16_swap_b32 v{z}, v{z+1}")
        a(f"v_add_f32 v{z}, v{z}, v{z+1}")
        a(f"v_add_f32_dpp v{z}, v{z}, v{z} row_ror:8 row_mask:0xf bank_mask:0xf")

    def read_frags(self, dst):
        a = self.a
        a(f"s_lshl_b32 s{sT}, s{sW}, 10")
        a(f"s_add_u32 s{sT}, s{sT}, {L_W}")
        a(f"v_add_u32 v4, s{sT}, v3")
        a("v_add_u32 v5, 0x10000, v4")
        for k in range(10):
            if k < 8: a(f"ds_read_b128 {vr(dst+4*k)}, v4 offset:{8192*k}")
            else: a(f"ds_read_b128 {vr(dst+4*k)}, v5 offset:{8192*(k-8)}")

    def ofinal_addr(self, st, va, vb, vo, vt):
        a = self.a
        a(f"v_bfe_u32 v{va}, v0, 2, 1")
        a(f"v_lshrrev_b32 v{vt}, 3, v0")
        a(f"v_lshl_add_u32 v{va}, v{va}, 4, v{vt}")
        a(f"v_and_b32 v{vb}, 3, v0")
        a(f"v_lshlrev_b32 v{vb}, 2, v{vb}")
        a(f"v_lshl_add_u32 v{va}, v{va}, 4, v{vb}")
        a(f"s_lshl_b32 s{sT+6}, s{st}, 10")
        a(f"s_add_u32 s{sT+6}, s{sT+6}, {L_OP}")
        a(f"v_add_u32 v{va}, s{sT+6}, v{va}")
        a(f"v_add_u32 v{vb}, 640, v{va}")
        a(f"v_and_b32 v{vo}, 3, v{vt}")
        a(f"v_lshlrev_b32 v{vo}, 8, v{vo}")
        a(f"v_lshrrev_b32 v{vt}, 5, v0")
        a(f"v_lshl_add_u32 v{vo}, v{vt}, 7, v{vo}")
        a(f"v_and_b32 v{vt}, 7, v0")
        a(f"v_lshl_add_u32 v{vo}, v{vt}, 1, v{vo}")
        a(f"s_mul_i32 s{sT+9}, s{sH}, 3")
        a(f"s_add_u32 s{sT+9}, s{sT+9}, s{st}")
        a(f"s_lshl_b32 s{sT+9}, s{sT+9}, 10")
        a(f"s_lshl4_add_u32 s{sT+9}, s{sB}, s{sT+9}")

    def ofinal(self, va, vb, vo):
        a = self.a
        a(f"ds_read2st64_b32 v[16:17], v{va} offset0:0 offset1:12")
        a(f"ds_read2st64_b32 v[18:19], v{vb} offset0:0 offset1:12")
        a(f"ds_read2st64_b32 v[20:21], v{va} offset0:24 offset1:36")
        a(f"ds_read2st64_b32 v[22:23], v{vb} offset0:24 offset1:36")
        a("s_waitcnt lgkmcnt(2)")
        a("v_add_f32 v16, v16, v17"); a("v_add_f32 v18, v18, v19")
        a("s_waitcnt lgkmcnt(0)")
        a("v_add_f32 v20, v20, v21"); a("v_add_f32 v22, v22, v23")
        a("v_add_f32 v16, v16, v18"); a("v_add_f32 v20, v20, v22")
        a("v_add_f32 v16, v16, v20")
        a("v_mov_b32_dpp v17, v16 quad_perm:[1,0,3,2] row_mask:0xf bank_mask:0xf")
        a("s_mov_b32 exec_lo, 0x55555555")
        a("s_mov_b32 exec_hi, 0x55555555")
        a("v_cvt_pk_bf16_f32 v24, v16, v17")
        self.pub("L_pubo", [f"buffer_store_dword v24, v{vo}, {srd(srdWS)}, s{sT+9} offen offset:{OBUF}"])
        a("s_mov_b64 exec, -1")

    def common_setup(self):
        a = self.a
        self.mksrd(srdWS, 24, WS_USED if not self.o["stamps"] else 4 << 20)
        self.mksrd(srdX, 4, 10240)

    def lane_setup(self):
        a = self.a
        a("v_lshlrev_b32 v3, 4, v0")
        a("v_lshrrev_b32 v2, 4, v0")
        a("v_and_b32 v7, 1, v6")
        a("v_lshl_add_u32 v2, v7, 2, v2")

    def byrole(self, dst, vals):
        a = self.a; o = self.o
        a(f"s_mov_b32 s{sT+3}, {vals[1]}")
        a(f"s_mov_b32 s{sT+4}, {vals[3]}")
        a(f"s_cmp_lt_u32 s{sR}, 24")
        a(f"s_cselect_b32 s{sT+3}, {vals[0]}, s{sT+3}")
        a(f"s_cselect_b32 s{sT+4}, {vals[2]}, s{sT+4}")
        a(f"s_cmp_ge_u32 s{sR}, {o['wk0']}")
        a(f"s_cselect_b32 s{sT+4}, s{sT+4}, s{sT+3}")
        a(f"s_cmp_eq_u32 s{sX}, 0")
        a(f"s_cselect_b32 s{dst}, s{sT+4}, s{sT+3}")

    def setphase(self, ph):
        o = self.o
        if o["dyn"] is not None: self.byrole(sBase, o["lvl1" if ph else "lvl0"])
        else:
            pat = lambda d: sum(1 << k for k in range(12) if (k + 1) * d // 12 != k * d // 12)
            self.byrole(sPat, [pat(d) for d in o["duty"][ph]])

    def ticket(self, k):
        a = self.a; o = self.o
        if o["dyn"] is None: return
        a(f"s_lshl_b32 s{sT+12}, s{sX}, 7")
        a(f"s_add_u32 s{sT+12}, s{sT+12}, {KBUF + 1024*k}")
        a(f"s_lshl_b32 s{sT+13}, s{sR}, 2")
        a("v_mov_b32 v11, 0")
        a(f"v_mov_b32 v10, s{sT+13}")
        a("v_lshlrev_b32 v9, 2, v0")
        if o["glob"]:
            a(f"s_sub_u32 s{sT+14}, {GBUF + 256*k - 128}, s{sT+12}")
            a("s_mov_b32 exec_lo, 0")
            a(f"v_add_u32 v9, s{sT+14}, v9")
        a("s_mov_b64 exec, 1")
        a(f"buffer_store_dword v11, v10, {srd(srdWS)}, s{sT+12} offen")
        a("s_mov_b64 exec, -1" if o["glob"] else "s_mov_b32 exec_lo, -1")
        a(f"buffer_load_dword v10, v9, {srd(srdWS)}, s{sT+12} offen sc1")
        a("s_waitcnt vmcnt(0)")
        a("v_cmp_eq_u32 vcc, 0, v10")
        a("s_mov_b64 exec, -1")
        a(f"s_bcnt1_i32_b32 s{sT+13}, vcc_lo")
        if o["glob"]:
            wl, wg = o["glob"]
            a(f"s_lshr_b32 s{sT+14}, s{sT+13}, 3")
            a(f"s_min_u32 s{sT+14}, s{sT+14}, 3")
            a(f"s_mul_i32 s{sT+15}, s{sX}, 3")
            a(f"s_bfm_b32 s{sT+14}, s{sT+14}, s{sT+15}")
            a(f"s_andn2_b32 exec_hi, s{sT+14}, vcc_hi")
            a("s_mov_b32 exec_lo, 0")
            a(f"s_cbranch_execz L_nomark{k}")
            a(f"buffer_store_dword v11, v9, {srd(srdWS)}, s{sT+12} offen sc1")
            a(f"L_nomark{k}:")
            a("s_mov_b64 exec, -1")
            a(f"s_bcnt1_i32_b32 s{sT+14}, vcc_hi")
            a(f"s_mul_i32 s{sT+13}, s{sT+13}, {wl}")
            a(f"s_mul_i32 s{sT+14}, s{sT+14}, {wg}")
            a(f"s_add_u32 s{sT+13}, s{sT+13}, s{sT+14}")
            a(f"s_lshr_b32 s{sT+13}, s{sT+13}, 4")
            a(f"s_max_u32 s{sT+13}, s{sT+13}, 1")
        a(f"v_mov_b32 v10, s{sT+13}")
        a(f"ds_write_b32 v11, v10 offset:{L_RK+4*k}")

    def readlevel(self, k):
        a = self.a; o = self.o
        if o["dyn"] is None: return
        lo, hi, gain = o["dyn"][min(k, len(o["dyn"]) - 1)]
        a("v_mov_b32 v13, 0")
        a(f"ds_read_b32 v13, v13 offset:{L_RK+4*k}")
        a("s_waitcnt lgkmcnt(0)")
        a(f"v_readfirstlane_b32 s{sT+3}, v13")
        a(f"s_cmp_eq_u32 s{sT+3}, 0")
        a(f"s_cselect_b32 s{sT+3}, 16, s{sT+3}")
        if o["g0bias"]:
            a(f"s_cmp_eq_u32 s{sX}, 0")
            a(f"s_cselect_b32 s{sT+4}, {o['g0bias']}, 0")
            a(f"s_sub_i32 s{sT+3}, s{sT+3}, s{sT+4}")
        a(f"s_sub_i32 s{sT+4}, {lo}, s{sT+3}")
        a(f"s_max_i32 s{sT+4}, s{sT+4}, 0")
        a(f"s_sub_i32 s{sT+5}, s{sT+3}, {hi}")
        a(f"s_max_i32 s{sT+5}, s{sT+5}, 0")
        a(f"s_cmp_lg_u32 s{sT+5}, 0")
        a(f"s_cselect_b32 s{sT+6}, {o['step'][min(k, 2)]}, -1")
        a(f"s_add_i32 s{sAlt}, s{sBase}, s{sT+6}")
        a(f"s_min_u32 s{sAlt}, s{sAlt}, 3")
        a(f"s_add_u32 s{sT+4}, s{sT+4}, s{sT+5}")
        a(f"s_mul_i32 s{sPat}, s{sT+4}, {gain}")
        a(f"s_lshr_b32 s{sPat}, s{sPat}, 2")

    def stream_setup(self):
        self.issued = 0; self.done = 0
        self.free = list(range(self.o["ring"])); self.slot = {}
        self.maxslot = self.o["ring"]
        self.Wmax = self.o["Wl"][3] + (2 if self.o["gwait"] else 0) if self.o["dyn"] is not None else self.o["Wk"]

    def partoff(self):
        a = self.a; c = self.o["wpart"]
        a(f"s_lshr_b32 s{sOff}, s{sGi}, {c}")
        a(f"s_lshl_b32 s{sOff}, s{sOff}, {c+2}")
        a(f"s_and_b32 s{sT+7}, s{sGi}, {(1 << c) - 1}")
        a(f"s_add_u32 s{sOff}, s{sOff}, s{sT+7}")
        a(f"s_mulk_i32 s{sOff}, 3072")

    def wait_out(self, n):
        if self.issued - self.done > n:
            self.a(f"s_waitcnt vmcnt({n})"); self.done = self.issued - n

    def issue(self, throttle=True):
        a = self.a; o = self.o
        i = self.issued
        if i >= 192: return
        t = i % 3
        if t == 0 and i > 0 and o["wpart"] is not None:
            a(f"s_add_u32 s{sGi}, s{sGi}, 1")
            a(f"s_and_b32 s{sGi}, s{sGi}, 31")
            self.partoff()
        elif t == 0 and i > 0 and o["skew"] is not None:
            a("v_add_u32 v253, 1, v253")
            a("v_and_b32 v253, 31, v253")
            a(f"v_mad_u32_u24 v12, v253, s{sPlo}, v254")
        elif t == 0 and i > 0 and o["gmul"] != 1:
            a(f"s_add_u32 s{sOff}, s{sOff}, {3072*o['gmul']}")
            a(f"s_sub_u32 s{sT+7}, s{sOff}, s{srdK+2}")
            a(f"s_cselect_b32 s{sOff}, s{sOff}, s{sT+7}")
        elif t == 0 and i > 0:
            a(f"s_addk_i32 s{sOff}, {384*o['krows']}")
            a(f"s_cmp_eq_u32 s{sOff}, s{srdK+2}" if o["krows"] == 8 else f"s_cmpk_eq_u32 s{sOff}, {12288*o['krows']}")
            a(f"s_cselect_b32 s{sOff}, 0, s{sOff}")
        if o["dyn"] is not None:
            if t == 0 and i >= 6:
                a(f"s_sub_u32 s{sPat}, s{sPat}, 1")
                a(f"s_cselect_b32 s{sPat}, 0, s{sPat}")
                a(f"s_cselect_b32 s{sLvl}, s{sBase}, s{sAlt}")
                a(f"s_bitcmp1_b32 s{sLvl}, 1")
                a("s_cselect_b64 vcc, -1, 0")
            Wl = o["Wend"] if (o["Wend"] and i >= o["endfrom"]) else o["Wl"]
            if throttle and self.issued - self.done > Wl[0] - 1 and (t == 0 or not o["gwait"]):
                self.nlab += 1; n = self.nlab
                a(f"s_bitcmp1_b32 s{sLvl}, 0")
                self.wait_out(Wl[3] - 1)
                a(f"s_cbranch_vccnz L_hi{n}")
                a(f"s_waitcnt vmcnt({Wl[1]-1})")
                a(f"s_cbranch_scc1 L_go{n}")
                a(f"s_waitcnt vmcnt({Wl[0]-1})")
                a(f"L_hi{n}:")
                a(f"s_cbranch_scc1 L_go{n}")
                a(f"s_waitcnt vmcnt({Wl[2]-1})")
                a(f"L_go{n}:")
        else:
            if t == 0 and i >= 6:
                a(f"s_bitcmp1_b32 s{sPat}, {(i // 3) % 12}")
                a("s_cselect_b64 vcc, -1, 0")
            if throttle and self.issued - self.done > o["W"] - 1:
                self.nlab += 1
                self.wait_out(o["Wk"] - 1)
                a(f"s_cbranch_vccnz L_wk{self.nlab}")
                a(f"s_waitcnt vmcnt({o['W']-1})")
                a(f"L_wk{self.nlab}:")
        self.free.sort()
        s = self.free.pop(0); assert s < self.maxslot, (i, s)
        self.slot[i] = s
        a(f"buffer_load_dwordx4 {vr(64+4*s)}, v12, {srd(srdK if i < 96 else srdV)}, s{sOff} offen offset:{128*t} {o['kvpol']}")
        self.issued += 1

    def consumeK(self, g):
        a = self.a
        self.wait_out(self.issued - 3 * (g + 1))
        base = [64 + 4 * self.slot[3 * g + t] for t in range(3)]
        acc = [32 + g, 13, 14]
        for d in range(4):
            for t in range(3):
                c = "0" if d == 0 else f"v{acc[t]}"
                a(f"v_dot2_f32_bf16 v{acc[t]}, v{base[t]+d}, v{16+4*t+d}, {c}")
        for t in range(3): self.free.append(self.slot.pop(3 * g + t))
        a("v_add_f32 v13, v13, v14")
        a(f"v_add_f32 v{32+g}, v{32+g}, v13")
        self.red_low3("v_add_f32", 32 + g)
        a(f"v_cvt_pk_bf16_f32 v{32+g}, 0, v{32+g}")
        a(f"v_mul_f32 v{32+g}, {hx(f2u(192 ** -0.5))}, v{32+g}")
        a(f"v_cvt_pk_bf16_f32 v{32+g}, 0, v{32+g}")
        if g & 1:
            p, q = 32 + g - 1, 32 + g
            if g == 1: a(f"v_max_f32 v15, v{p}, v{q}")
            else: a(f"v_max3_f32 v15, v15, v{p}, v{q}")

    def consumeV(self, g, fine=False):
        a = self.a
        A = 4 if g & 1 else 8
        for d in range(4): a(f"v_and_b32 v{A+d}, v{32+g}, v{28+d}")
        i0 = 96 + 3 * g
        if not fine: self.wait_out(self.issued - (i0 + 3))
        for t in range(3):
            if fine: self.wait_out(self.issued - (i0 + t + 1))
            s = self.slot.pop(i0 + t); self.free.append(s)
            c = "0" if g == 0 else vr(16 + 4 * t)
            a(f"v_mfma_f32_16x16x32_bf16 {vr(16+4*t)}, {vr(A)}, {vr(64+4*s)}, {c}")

    def sec_start(self):
        a = self.a; o = self.o
        a(f"{NAME}_kernel:")
        a("s_cmpk_ge_u32 s2, 0x100")
        a("s_cbranch_scc1 L_end")
        a("s_load_dwordx16 s[4:19], s[0:1], 0")
        a("s_load_dwordx4 s[20:23], s[0:1], 64")
        a("s_load_dwordx2 s[24:25], s[0:1], 80")
        if o["stamps"] or o["hold"]: a(f"s_memrealtime s[{sST}:{sST+1}]")
        a(f"s_getpc_b64 s[{sT+8}:{sT+9}]")
        a("L_ipc:")
        a(f"s_mov_b32 s{sT+10}, L_last-L_ipc")
        a(f"s_mov_b32 s{sT+11}, 0x20000")
        a(f"s_lshr_b32 s{sR}, s2, 3")
        a(f"s_lshl_b32 s{sT+3}, s{sR}, 10")
        a("v_lshlrev_b32 v1, 1, v0")
        a(f"buffer_load_ushort v255, v1, s[{sT+8}:{sT+11}], s{sT+3} offen")
        a(f"v_readfirstlane_b32 s{sW}, v0")
        a("v_and_b32 v0, 63, v0")
        if o["xshift"]:
            a(f"s_add_u32 s{sX}, s2, {o['xshift']}")
            a(f"s_and_b32 s{sX}, s{sX}, 7")
        else:
            a(f"s_and_b32 s{sX}, s2, 7")
        a(f"s_lshr_b32 s{sW}, s{sW}, 6")
        a("v_and_b32 v1, 7, v0")
        a("v_lshlrev_b32 v1, 4, v1")
        a("v_lshrrev_b32 v6, 3, v0")
        a(f"s_and_b32 s{sT}, s{sR}, 3")
        a(f"s_lshl2_add_u32 s{sH}, s{sX}, s{sT}")
        a(f"s_lshr_b32 s{sB}, s{sR}, 2")
        self.lane_setup()
        a(f"s_cmp_ge_u32 s{sW}, 4")
        a("s_cbranch_scc1 L_helper")
        a(f"s_lshl_b32 s{sT}, s{sB}, 5")
        a(f"s_add_u32 s{sT}, s{sT}, s{sH}")
        a(f"s_lshl4_add_u32 s{sT}, s{sT}, s{sW}")
        a(f"s_add_u32 s{sT}, s{sT}, 12")
        a(f"s_mov_b32 s{srdK+2}, 98304")
        a(f"s_mul_i32 s{sT}, s{sT}, s{srdK+2}")
        if o["rot4"]:
            rx, rh, rb, rw = o["rot4"]
            a(f"s_mul_i32 s{sOff}, s{sX}, {rx}")
            a(f"s_and_b32 s{sT+1}, s{sR}, 3")
            a(f"s_mul_i32 s{sT+1}, s{sT+1}, {rh}")
            a(f"s_add_u32 s{sOff}, s{sOff}, s{sT+1}")
            a(f"s_mul_i32 s{sT+1}, s{sB}, {rb}")
            a(f"s_add_u32 s{sOff}, s{sOff}, s{sT+1}")
            if rw:
                a(f"s_mul_i32 s{sT+1}, s{sW}, {rw}")
                a(f"s_add_u32 s{sOff}, s{sOff}, s{sT+1}")
        elif o["rot3"]:
            rx, rr, rw = o["rot3"]
            a(f"s_mul_i32 s{sOff}, s{sX}, {rx}")
            a(f"s_mul_i32 s{sT+1}, s{sR}, {rr}")
            a(f"s_add_u32 s{sOff}, s{sOff}, s{sT+1}")
            a(f"s_mul_i32 s{sT+1}, s{sW}, {rw}")
            a(f"s_add_u32 s{sOff}, s{sOff}, s{sT+1}")
        else:
            a(f"s_mul_i32 s{sOff}, s2, {o['rot']}")
        a(f"s_and_b32 s{sOff}, s{sOff}, 31")
        kr = o["krows"]
        if o["wpart"] is not None: a(f"s_mov_b32 s{sGi}, s{sOff}")
        if o["skew"] is not None: a(f"s_mov_b32 s{sT+2}, s{sOff}")
        a(f"s_mulk_i32 s{sOff}, {384*kr}")
        if kr == 8:
            a("v_mul_u32_u24 v12, 384, v6")
        elif kr == 1:
            a("v_mul_u32_u24 v12, 12288, v6")
        else:
            a(f"v_lshrrev_b32 v12, {kr.bit_length()-1}, v6")
            a(f"v_mul_u32_u24 v12, {12288*kr}, v12")
            a(f"v_and_b32 v13, {kr-1}, v6")
            a("v_mul_u32_u24 v13, 384, v13")
            a("v_add_u32 v12, v12, v13")
        a("v_add_u32 v12, v12, v1")
        if o["skew"] is not None:
            a("v_mov_b32 v254, v12")
            a(f"v_lshrrev_b32 v253, {kr.bit_length()-1}, v6")
            a(f"v_mul_u32_u24 v253, {o['skew']}, v253")
            a(f"v_add_u32 v253, s{sT+2}, v253")
            a("v_and_b32 v253, 31, v253")
            a(f"s_movk_i32 s{sPlo}, {384*kr}")
            a(f"v_mad_u32_u24 v12, v253, s{sPlo}, v254")
            a(f"s_mov_b32 s{sOff}, 0")
        if o["wpart"] is not None:
            a(f"s_mul_i32 s{sT+1}, s{sW}, s{srdK+2}")
            a(f"s_sub_u32 s{sT}, s{sT}, s{sT+1}")
            a(f"s_mulk_i32 s{sT+1}, 0")
            a(f"s_lshl_b32 s{sT+1}, s{sW}, {o['wpart']}")
            a(f"s_mulk_i32 s{sT+1}, 3072")
            a(f"v_add_u32 v12, s{sT+1}, v12")
            a(f"s_mov_b32 s{srdK+2}, 393216")
            self.partoff()
        a(f"s_mov_b32 s{srdK+3}, 0x20000")
        a("s_waitcnt lgkmcnt(0)")
        if o["rotmem"]:
            a(f"s_lshl2_add_u32 s{sT+1}, s2, s{sW}")
            a(f"s_lshl_b32 s{sT+1}, s{sT+1}, 2")
            a(f"s_add_u32 s{sT+1}, s{sT+1}, {5 << 20}")
            a(f"s_load_dword s{sOff}, s[24:25], s{sT+1}")
            a("s_waitcnt lgkmcnt(0)")
        a(f"s_add_u32 s{srdK}, s6, s{sT}")
        a(f"s_addc_u32 s{srdK+1}, s7, 0")
        self.stream_setup()
        for _ in range(o["W0"]): self.issue(throttle=False)
        a("s_branch L_stream")

        a("L_helper:")
        a("v_mov_b32 v8, 0"); a("v_mov_b32 v9, 0")
        a(f"ds_write_b64 v8, v[8:9] offset:{L_SM+40}")
        if True:
            a(f"ds_write_b32 v8, v8 offset:{L_SM+36}")
            a(f"ds_write_b64 v8, v[8:9] offset:{L_SM+56}")
            a("v_lshlrev_b32 v10, 2, v1")
            a("v_lshrrev_b32 v10, 4, v10")
            a(f"ds_write_b32 v10, v8 offset:{L_RK}")
        a(f"s_mov_b32 s{sPlo}, 0x05040100")
        a(f"s_mov_b32 s{sPhi}, 0x07060302")
        a(f"s_sub_u32 s{sT+5}, s{sW}, 5")
        a(f"s_cmp_ge_u32 s{sR}, 24")
        a("s_cbranch_scc1 L_clear")
        a(f"s_cmp_lg_u32 s{sW}, 4")
        a("s_cbranch_scc1 L_xld")
        if o["prio"]: a(f"s_setprio {o['prio']}")
        a(f"s_cmp_ge_u32 s{sR}, 12")
        a(f"s_cselect_b32 s{sT+3}, 1, 0")
        a(f"s_mul_i32 s{sT+4}, s{sT+3}, 12")
        a(f"s_sub_u32 s{sT+4}, s{sR}, s{sT+4}")
        a(f"s_mul_i32 s{sT+5}, s{sT+3}, {320*12288}")
        a(f"s_mul_i32 s{sT+6}, s{sX}, 1536")
        a(f"s_add_u32 s{sT+5}, s{sT+5}, s{sT+6}")
        a(f"s_lshl_b32 s{sT+6}, s{sT+4}, 7")
        a(f"s_add_u32 s{sT+5}, s{sT+5}, s{sT+6}")
        a(f"v_mul_u32_u24 v7, {8*12288}, v2")
        a("v_add_u32 v7, v7, v1")
        a(f"s_movk_i32 s{sT+6}, 12288")
        a(f"s_mov_b32 s{sT+7}, {57*12288}")
        a("s_waitcnt lgkmcnt(0)")
        self.mksrd(srdWt, 10, 7864320)
        for kb in range(5):
            for e in range(8):
                a(f"buffer_load_dwordx4 {vr(64+32*kb+4*e)}, v7, {srd(srdWt)}, s{sT+5} offen {o['wpol']}")
                if kb * 8 + e < 39: a(f"s_add_u32 s{sT+5}, s{sT+5}, s{sT+6 if e < 7 else sT+7}")
        a("s_barrier")
        a("s_branch L_h0q")
        a("L_clear:")
        for k in range(4): a(f"v_mov_b32 v{8+k}, -1")
        a(f"s_sub_u32 s{sT+3}, s2, 192")
        a(f"s_lshl2_add_u32 s{sT+3}, s{sT+3}, s{sW}")
        a(f"s_sub_u32 s{sT+3}, s{sT+3}, 4")
        a(f"s_mulk_i32 s{sT+3}, 6144")
        a(f"s_add_u32 s{sT+4}, s{sT+3}, 4096")
        a("s_waitcnt lgkmcnt(0)")
        self.mksrd(srdWt, 24, CLR_END)
        for k in range(o["nclr"]):
            a(f"buffer_store_dwordx4 v[8:11], v3, {srd(srdWt)}, s{sT+3+(k>>2)} offen offset:{1024*(k%4)} sc1")
        a("s_barrier")
        self.stamp_init()
        self.common_setup()
        a("s_waitcnt vmcnt(0)")
        a(f"s_cmp_eq_u32 s{sW}, 4")
        a("s_cbranch_scc1 L_h0c")
        a("s_branch L_rowsdone")
        a("L_xld:")
        a(f"s_mul_i32 s{sT+6}, s{sT+5}, 3840")
        a("v_lshlrev_b32 v5, 2, v0")
        a("s_waitcnt lgkmcnt(0)")
        self.common_setup()
        for k in range(3):
            a(f"buffer_load_dwordx4 {vr([32, 64, 70][k])}, v3, {srd(srdX)}, s{sT+6} offen offset:{1280*k}")
            a(f"buffer_load_dword v{[36, 68, 74][k]}, v5, {srd(srdX)}, s{sT+6} offen offset:{1280*k+1024}")
        a("s_barrier")
        self.stamp_init()
        a(f"s_mul_i32 s{sT+7}, s{sT+5}, 3")
        a(f"s_mul_i32 s{sT+8}, s{sT+7}, {XRS}")
        a(f"v_add_u32 v12, s{sT+8}, v3")
        a(f"v_add_u32 v13, s{sT+8}, v5")
        a(f"s_add_u32 s{sT+8}, s{sT+7}, 3")
        a(f"s_min_u32 s{sT+8}, s{sT+8}, 8")
        a("s_waitcnt vmcnt(0)")
        if o["fine0"]: self.stamp(10)
        a("L_lnrow:")
        for i in range(5):
            a(f"v_lshlrev_b32 v{40+2*i}, 16, v{32+i}"); a(f"v_and_b32 v{41+2*i}, 0xffff0000, v{32+i}")
        self.layernorm()
        a(f"ds_write_b128 v12, v[32:35] offset:{L_XN}")
        a(f"ds_write_b32 v13, v36 offset:{L_XN+1024}")
        a(f"v_add_u32 v12, {XRS}, v12")
        a(f"v_add_u32 v13, {XRS}, v13")
        a("s_waitcnt lgkmcnt(0)")
        for i in range(5): a(f"v_mov_b32 v{32+i}, v{64+i}")
        for i in range(5): a(f"v_mov_b32 v{64+i}, v{70+i}")
        a(f"s_add_u32 s{sT+7}, s{sT+7}, 1")
        a(f"s_cmp_lt_u32 s{sT+7}, s{sT+8}")
        a("s_cbranch_scc1 L_lnrow")
        a("L_rowsdone:")
        a("v_mov_b32 v4, 0")
        a("v_mov_b32 v7, 1")
        a("s_mov_b64 exec, 1")
        a(f"ds_add_u32 v4, v7 offset:{L_SM+40}")
        a("s_mov_b64 exec, -1")
        if o["fine0"]: self.stamp(11)
        a("s_branch L_h123")

    def sec_h0q(self):
        a = self.a; o = self.o
        a("L_h0c:")
        self.mksrd(srdDBG, 22, 256)
        self.ldswait("L_rowsc", L_SM + 40, 3)
        a(f"s_lshl_b32 s{sT+4}, s{sX}, 5")
        a("v_mov_b32 v7, 1")
        a("s_mov_b64 exec, 1")
        if o["fine0"]: self.stamp(10)
        a(f"buffer_atomic_add v7, v3, {srd(srdDBG)}, s{sT+4} offen sc1")
        a("s_waitcnt vmcnt(0)")
        if o["fine0"]: self.stamp(11)
        if o["csleep"]: a(f"s_sleep {o['csleep']}")
        a("s_mov_b64 exec, 0xff")
        a("v_lshlrev_b32 v13, 5, v0")
        a(f"s_mov_b32 s{sCnt}, {SPIN}")
        a("s_branch L_qwait")
        a("L_h0q:")
        self.stamp_init()
        self.stamp(1)
        self.common_setup()
        self.mksrd(srdDBG, 22, 256)
        a("v_and_b32 v8, 7, v0")
        a(f"v_mul_u32_u24 v8, {XRS}, v8")
        a("v_lshl_add_u32 v8, v2, 4, v8")
        a(f"s_mul_i32 s{sT+5}, s{sT+3}, 640")
        a(f"v_add_u32 v8, s{sT+5}, v8")
        TQ = [224, 64, 96, 128, 160]
        for kb in range(5):
            a(f"s_waitcnt vmcnt({8*(4-kb)})")
            self.transpose(64 + 32 * kb, TQ[kb])
        if o["fine0"]: self.stamp(10)
        self.ldswait("L_rows", L_SM + 40, 3)
        if o["fine0"]: self.stamp(11)
        for kb in range(5): a(f"ds_read_b128 {vr(12+4*kb)}, v8 offset:{L_XN+128*kb}")
        for kb in range(5):
            a(f"s_waitcnt lgkmcnt({4-kb})")
            for m in range(8):
                c = "0" if kb == 0 else vr(32 + 4 * m)
                a(f"v_mfma_f32_16x16x32_bf16 {vr(32+4*m)}, {vr(12+4*kb)}, {vr(TQ[kb]+4*m)}, {c}")
        self.combineB([32 + 4 * m for m in range(8)], [64 + m for m in range(8)])
        if o["fine0"]: self.stamp(8)
        a("v_lshlrev_b32 v13, 5, v0")
        a("s_mov_b64 exec, 0xff")
        ld = f"buffer_load_dword v14, v13, {srd(srdDBG)}, 0 offen"
        self.poll("L_qwait", [ld + " sc1"], None, None, first=[ld], cmp="v_cmp_gt_u32 vcc, 8, v14")
        a("s_mov_b64 exec, -1")
        a(f"s_getreg_b32 s{sT+9}, hwreg(HW_REG_XCC_ID, 0, 4)")
        a(f"s_lshl_b32 s{sT+8}, s{sX}, 7")
        a(f"s_add_u32 s{sT+8}, s{sT+8}, {TBUF}")
        a(f"s_lshl2_add_u32 s{sT+6}, s{sR}, s{sT+8}")
        a(f"v_mov_b32 v12, s{sT+9}")
        a(f"s_mul_i32 s{sT+5}, s{sX}, 24")
        a(f"s_add_u32 s{sT+7}, s{sT+5}, s{sR}")
        a(f"s_lshl_b32 s{sT+7}, s{sT+7}, 11")
        a(f"s_add_u32 s{sT+7}, s{sT+7}, {QBUF}")
        a(f"s_cmp_lt_u32 s{sR}, 24")
        a(f"s_cselect_b64 s[{sT+14}:{sT+15}], -1, 0")
        def publish(pol, tag):
            L = [f"s_mov_b64 exec, s[{sT+14}:{sT+15}]", f"s_cbranch_execz {tag}"]
            L += [f"buffer_store_dwordx4 {vr(64+4*q)}, v3, {srd(srdWS)}, s{sT+7} offen offset:{1024*q} {pol}".rstrip() for q in range(2)]
            L += [f"{tag}:", "s_mov_b64 exec, 1", f"buffer_store_dword v12, v3, {srd(srdWS)}, s{sT+6} offen {pol}".rstrip(), "s_mov_b64 exec, -1"]
            return L
        for s in publish("" if o["local"] else "sc1", "L_qp0"): a(s)
        self.stamp(2)
        a("v_lshl_add_u32 v8, v6, 10, v1")
        a(f"s_and_b32 s{sT+10}, s{sR}, 3")
        a(f"s_mul_i32 s{sT+10}, s{sT+10}, 3")
        a(f"s_add_u32 s{sT+10}, s{sT+10}, s{sT+5}")
        a(f"s_lshl_b32 s{sT+10}, s{sT+10}, 11")
        self.swapbits(sT + 11, sB, sT + 12)
        a(f"s_lshl_b32 s{sT+11}, s{sT+11}, 7")
        a(f"s_add_u32 s{sT+10}, s{sT+10}, s{sT+11}")
        a(f"s_add_u32 s{sT+11}, s{sT+10}, {QBUF + 12*2048}")
        a(f"s_add_u32 s{sT+10}, s{sT+10}, {QBUF}")
        a("v_lshrrev_b32 v9, 4, v0")
        a("v_lshl_add_u32 v9, v9, 7, v1")
        a("v_and_b32 v10, 8, v0")
        a("v_add_u32 v9, v9, v10")
        a(f"s_mov_b32 s{sCnt}, {o['n1']}")
        a(f"s_mov_b32 s{sT+13}, 0")
        a("L_pq:")
        if o["qsleep"]: a(f"s_sleep {o['qsleep']}")
        a("s_mov_b32 exec_hi, 0xffff")
        for rb in range(2): a(f"buffer_load_dwordx4 {vr(16+4*rb)}, v8, {srd(srdWS)}, s{sT+10+rb} offen sc1")
        a(f"buffer_load_dwordx4 v[24:27], v1, {srd(srdWS)}, s{sT+8} offen sc1")
        a(f"s_sub_u32 s{sCnt}, s{sCnt}, 1")
        a("s_waitcnt vmcnt(0)")
        a("s_cbranch_scc1 L_pq_late")
        self.anyclear(range(16, 28), 4)
        a("s_cbranch_vccnz L_pq")
        a("L_pq_x:")
        for j in range(4): a(f"v_add_f32 v{16+j}, v{16+j}, v{20+j}")
        for k in range(4): a(f"v_xor_b32 v{24+k}, s{sT+9}, v{24+k}")
        a("v_cvt_pk_bf16_f32 v16, v16, v17")
        a("v_cvt_pk_bf16_f32 v17, v18, v19")
        a(f"ds_write_b64 v9, v[16:17] offset:{L_Q}")
        a("v_or3_b32 v24, v24, v25, v26")
        a("v_or_b32 v24, v24, v27")
        a("v_cmp_ne_u32 vcc, 0, v24")
        a("s_mov_b64 exec, -1")
        a("s_cmp_eq_u64 vcc, 0")
        a(f"s_cselect_b32 s{sLOC}, 1, 0")
        a(f"v_mov_b32 v10, s{sLOC}")
        a("v_mov_b32 v11, 0")
        a(f"ds_write_b32 v11, v10 offset:{L_SM+32}")
        a(f"s_or_b32 s{sT+13}, s{sT+13}, s{sLOC}")
        a("s_cbranch_scc0 L_pq_far")
        a("L_pq_done:")
        self.cold += ["L_pq_late:", f"s_cmp_eq_u32 s{sT+13}, 0", "s_cbranch_scc0 L_pq_x", f"s_mov_b32 s{sT+13}, 1", f"s_mov_b32 s{sCnt}, {SPIN}"] \
            + publish("sc1", "L_qp1") + ["s_branch L_pq"]
        self.cold += ["L_pq_far:"] + publish("sc1", "L_qp2") + ["s_branch L_pq_done"]
        a("s_waitcnt lgkmcnt(0)")
        if o["prio"]: a("s_setprio 0")
        self.stamp(3)
        a("s_barrier")
        self.ticket(0)
        for n, _ in enumerate(o["cpk"] or []):
            self.ldswait(f"L_kprog0{n}", L_SM + 44, n + 1, sleep=4)
            self.ticket(2 + n)
        a("s_barrier")
        self.read_frags(176)
        self.ticket(1)
        a("s_waitcnt lgkmcnt(0)")
        a("s_barrier")
        if o["dyn"] is not None:
            nk = len(o["cpk"] or [])
            for n, _ in enumerate(o["cps"] or [o["cp3"]]):
                self.ldswait(f"L_vprog0{n}", L_SM + 44, nk + n + 1, sleep=4)
                self.ticket(2 + nk + n)
        a("s_branch L_wo")

    def sec_stream(self):
        a = self.a; o = self.o
        a("L_stream:")
        self.stamp_init()
        if o["fine0"]: self.stamp(9)
        self.mksrd(srdV, 8, 98304 if o["wpart"] is None else 393216, f"s{sT}")
        self.common_setup()
        a("v_and_b32 v4, 1, v0")
        a("v_lshlrev_b32 v4, 4, v4")
        a("v_mov_b32 v7, 0xffff")
        a("v_lshlrev_b32 v4, v4, v7")
        a("v_bfe_u32 v7, v0, 1, 2")
        for d in range(4):
            a(f"v_cmp_eq_u32 vcc, {d}, v7")
            a(f"v_cndmask_b32 v{28+d}, 0, v4, vcc")
        self.setphase(0)
        if o["dyn"] is not None:
            a(f"s_mov_b32 s{sPat}, 0")
            a(f"s_mov_b32 s{sLvl}, 1")
        a("s_mov_b64 vcc, 0")
        a("s_barrier")
        self.stamp(1)
        while self.issued < o["ring"]: self.issue()
        self.stamp(2)
        a("s_barrier")
        self.stamp(3)
        for t in range(3): a(f"ds_read_b128 {vr(16+4*t)}, v1 offset:{L_Q+128*t}")
        self.setphase(1)
        a("s_waitcnt lgkmcnt(0)")
        keep = (self.Wmax + 2) // 3 + 1
        g = 0
        while g < 32:
            lag = self.issued // 3 - g
            for _ in range(2 if lag > keep else 1):
                if g < 32: self.consumeK(g); g += 1
            if g < 32:
                for _ in range(3): self.issue()
                if self.issued == o["ring"] + 3 * o["d0"]: self.readlevel(0)
                for n, cp in enumerate(o["cpk"] or []):
                    if self.issued == 3 * cp:
                        a("v_mov_b32 v13, 0")
                        a(f"v_mov_b32 v14, {n+1}")
                        a(f"ds_max_u32 v13, v14 offset:{L_SM+44}")
                    if self.issued == 3 * (cp + o["dstart"] + 1): self.readlevel(2 + n)
        self.maxslot = 27
        assert all(s < 27 for s in self.slot.values())
        self.red_high3("v_max_f32", 15, 13)
        a(f"s_lshl_b32 s{sT}, s{sW}, 2")
        a(f"v_mov_b32 v14, s{sT}")
        a("s_mov_b64 exec, 1")
        a(f"ds_write_b32 v14, v15 offset:{L_SM}")
        a("s_mov_b64 exec, -1")
        for _ in range(o["burst3"]): self.issue(throttle=False)
        a("s_waitcnt lgkmcnt(0)")
        self.stamp(4)
        a("s_barrier")
        self.stamp(5)
        a("v_mov_b32 v13, 0")
        a(f"ds_read_b128 v[8:11], v13 offset:{L_SM}")
        a(f"ds_read_b32 v16, v13 offset:{L_SM+32}")
        self.read_frags(176)
        a("s_waitcnt lgkmcnt(10)")
        a(f"v_readfirstlane_b32 s{sLOC}, v16")
        a("v_max3_f32 v15, v8, v9, v10")
        a("v_max_f32 v15, v15, v11")
        l2e = hx(f2u(1.4426950408889634))
        for g in range(32):
            a(f"v_sub_f32 v{32+g}, v{32+g}, v15")
            a(f"v_mul_f32 v{32+g}, {l2e}, v{32+g}")
            a(f"v_exp_f32 v{32+g}, v{32+g}")
            if g == 2: a("v_add_f32 v13, v32, v33")
            elif g > 2: a(f"v_add_f32 v13, v13, v{32+g-1}")
        a("v_add_f32 v13, v13, v63")
        self.red_high3("v_add_f32", 13, 15)
        a("s_mov_b64 exec, 1")
        a(f"ds_write_b32 v14, v13 offset:{L_SM+16}")
        a("s_mov_b64 exec, -1")
        for _ in range(o["burst4"]): self.issue(throttle=False)
        a("s_waitcnt lgkmcnt(0)")
        a("s_barrier")
        self.stamp(6)
        a("v_mov_b32 v13, 0")
        a(f"ds_read_b128 v[8:11], v13 offset:{L_SM+16}")
        a("s_waitcnt lgkmcnt(0)")
        a("v_add_f32 v8, v8, v9"); a("v_add_f32 v10, v10, v11"); a("v_add_f32 v13, v8, v10")
        a("v_rcp_f32 v13, v13")
        for g in range(32):
            a(f"v_mul_f32 v{32+g}, v{32+g}, v13")
            a(f"v_cvt_pk_bf16_f32 v{32+g}, v{32+g}, v{32+g}")
        while self.issued % 3: self.issue()
        v0issued = self.issued
        a(f"s_mul_i32 s{sT}, s{sW}, 3072")
        a(f"v_add_u32 v15, s{sT}, v3")
        if o["woafter"]: self.ofinal_addr(sW, 172, 173, 174, 175)
        g = 0
        while g < 32:
            lag = (self.issued - 96) // 3 - g
            if self.issued >= 192:
                self.consumeV(g, fine=True); g += 1
                continue
            if o["Wend"] and self.issued >= o["endfrom"]: keep = (o["Wend"][3] + 2) // 3 + 1
            n = 2 if lag > keep else (1 if lag == keep else 0)
            for _ in range(n): self.consumeV(g); g += 1
            for _ in range(3): self.issue()
            if self.issued == v0issued + 3: self.readlevel(1)
            for n, cp in enumerate(o["cps"] or [o["cp3"]]):
                nk = len(o["cpk"] or [])
                if o["dyn"] is not None and self.issued == 96 + 3 * cp:
                    a("v_mov_b32 v13, 0")
                    a(f"v_mov_b32 v14, {nk+n+1}")
                    a(f"ds_max_u32 v13, v14 offset:{L_SM+44}")
                if self.issued == 96 + 3 * (cp + o["dstart"] + 1): self.readlevel(2 + nk + n)
            if self.issued == 96 + 3 * o["wolate"]:
                a("v_mov_b32 v13, 0")
                a("v_mov_b32 v14, 1")
                a("s_mov_b64 exec, 1")
                a(f"ds_add_u32 v13, v14 offset:{L_SM+36}")
                a("s_mov_b64 exec, -1")
        for t in range(3): a(f"ds_write_b128 v15, {vr(16+4*t)} offset:{L_OP+1024*t}")
        a("s_waitcnt lgkmcnt(0)")
        self.stamp(7)
        a("s_barrier")
        if o["notail"]: a("s_branch L_done")
        if o["woafter"]:
            a(f"s_cmp_eq_u32 s{sW}, 3")
            a("s_cbranch_scc1 L_noof")
            self.ofinal(172, 173, 174)
            self.stamp(8)
            a("L_noof:")
        a(f"s_cmp_lg_u32 s{sX}, 0")
        a("s_cbranch_scc1 L_done")
        a(f"s_mov_b32 s{sT+10}, s{sW}")
        a("s_branch L_grp0")

    def sec_h123(self):
        a = self.a; o = self.o
        a("L_h123:")
        a(f"s_sub_u32 s{sT+3}, s{sR}, {o['wk0']}")
        a(f"s_cmp_lt_u32 s{sT+3}, 24")
        a(f"s_cselect_b32 s{sT+4}, 1, 0")
        a(f"s_cmp_eq_u32 s{sX}, 0")
        a(f"s_cselect_b32 s{sT+4}, s{sT+4}, 0")
        hw = o["hw"]
        def stage(tag, ptr, nbytes, rstride, base_expr, blkstep, first, last, w2=False):
            a(f"s_cmp_eq_u32 s{sT+4}, 0")
            a(f"s_cbranch_scc1 {tag}_e")
            self.mksrd(srdWt, ptr, nbytes)
            a(f"v_mul_u32_u24 v7, {rstride}, v2")
            a("v_add_u32 v7, v7, v1")
            a(f"s_mul_i32 s{sT+6}, s{sT+3}, {base_expr}")
            a(f"s_add_u32 s{sT+7}, s{sT+5}, {first}")
            if w2:
                a("v_bfe_u32 v9, v0, 2, 1")
                a("v_lshlrev_b32 v9, 11, v9")
                a("v_bfe_u32 v10, v0, 3, 1")
                a("v_lshl_add_u32 v9, v10, 10, v9")
                a("v_lshrrev_b32 v10, 4, v0")
                a("v_lshl_add_u32 v9, v10, 8, v9")
                a("v_and_b32 v10, 3, v0")
                a("v_lshl_add_u32 v9, v10, 6, v9")
            a(f"{tag}:")
            a(f"s_mul_i32 s{sT+8}, s{sT+7}, {blkstep}")
            a(f"s_add_u32 s{sT+8}, s{sT+8}, s{sT+6}")
            for e in range(8):
                if e >= hw: a(f"s_waitcnt vmcnt({hw-1})")
                a(f"buffer_load_dwordx4 {vr(64+4*e)}, v7, {srd(srdWt)}, s{sT+8} offen {o['wpol']}")
                if e < 7: a(f"s_add_u32 s{sT+8}, s{sT+8}, {8*rstride}")
            a(f"s_lshl_b32 s{sT+8}, s{sT+7}, 13")
            a(f"s_add_u32 s{sT+8}, s{sT+8}, {L_W}")
            a(f"v_add_u32 v8, s{sT+8}, v{9 if w2 else 3}")
            a("s_waitcnt vmcnt(0) lgkmcnt(0)")
            self.transpose(64, 128)
            for m in range(8): a(f"ds_write_b128 v8, {vr(128+4*m)} offset:{(m>>2)*4096+(m&3)*16 if w2 else 1024*m}")
            a(f"s_add_u32 s{sT+7}, s{sT+7}, 3")
            a(f"s_cmp_lt_u32 s{sT+7}, {last}")
            a(f"s_cbranch_scc1 {tag}")
            a("s_waitcnt lgkmcnt(0)")
            a(f"{tag}_e:")
        sp = o["w1split"]
        if sp: stage("L_st0", 16, 1966080, 3072, 128, 64 * 3072, 0, sp)
        a("s_barrier")
        stage("L_st1", 16, 1966080, 3072, 128, 64 * 3072, sp, 10)
        self.stamp(4)
        a("s_barrier")
        a("v_mov_b32 v13, 0")
        a(f"ds_read_b32 v16, v13 offset:{L_SM+32}")
        self.read_frags(176)
        a("s_waitcnt lgkmcnt(0)")
        a(f"v_readfirstlane_b32 s{sLOC}, v16")
        a("s_barrier")
        stage("L_st2", 18, 1966080, 1280, 64 * 1280, 128, 0, 10, w2=True)
        if not o["woafter"]: self.ofinal_addr(sT + 5, 8, 9, 10, 11)
        if o["predirty"] and o["local"]:
            self.ldswait("L_vprog1", L_SM + 44, 2, sleep=4)
            a(f"s_cmp_eq_u32 s{sLOC}, 1")
            a("s_cbranch_scc0 L_nopd0")
            a("v_mov_b32 v24, -1")
            a("s_mov_b32 exec_lo, 0x55555555")
            a("s_mov_b32 exec_hi, 0x55555555")
            a(f"buffer_store_dword v24, v10, {srd(srdWS)}, s{sT+9} offen offset:{OBUF}")
            a("s_mov_b64 exec, -1")
            a("L_nopd0:")
        a(f"s_cmp_lg_u32 s{sW}, 6")
        a("s_cbranch_scc1 L_b5")

    def sec_wo(self):
        a = self.a; o = self.o
        a("L_wo:")
        self.mksrd(srdWt, 12, 7864320)
        a(f"s_cmp_ge_u32 s{sR}, 30")
        a(f"s_cselect_b32 s{srdWt+2}, 0, s{srdWt+2}")
        a(f"s_bfe_u32 s{sT+2}, s{sW}, 0x10001")
        a(f"s_mul_i32 s{sT+3}, s{sR}, 26")
        a(f"s_lshr_b32 s{sT+3}, s{sT+3}, 8")
        a(f"s_mul_i32 s{sT+4}, s{sT+3}, 10")
        a(f"s_sub_u32 s{sT+4}, s{sR}, s{sT+4}")
        a(f"s_mul_i32 s{sT+6}, s{sX}, 3")
        a(f"s_add_u32 s{sT+3}, s{sT+3}, s{sT+6}")
        a(f"s_lshl1_add_u32 s{sT+6}, s{sT+3}, s{sT+2}")
        a(f"s_mul_i32 s{sT+6}, s{sT+6}, {128*1280}")
        a(f"s_lshl_b32 s{sT+7}, s{sT+4}, 7")
        a(f"s_add_u32 s{sT+6}, s{sT+6}, s{sT+7}")
        a(f"v_mul_u32_u24 v15, {8*1280}, v2")
        a("v_add_u32 v15, v15, v1")
        a(f"s_lshl_b32 s{sT+7}, s{sT+2}, 13")
        a(f"s_add_u32 s{sT+7}, s{sT+7}, {L_WX}")
        a(f"v_add_u32 v12, s{sT+7}, v3")
        a("v_xor_b32 v7, 0, v3")
        a(f"s_xor_b32 s{sT+7}, s{sT+2}, 1")
        a(f"s_lshl_b32 s{sT+7}, s{sT+7}, 13")
        a(f"s_add_u32 s{sT+7}, s{sT+7}, {L_WX}")
        a(f"v_add_u32 v7, s{sT+7}, v7")
        a(f"s_lshl_b32 s{sT+8}, s{sT+3}, 12")
        a(f"s_lshl_b32 s{sT+7}, s{sT+2}, 11")
        a(f"s_add_u32 s{sT+12}, s{sT+8}, s{sT+7}")
        a(f"s_xor_b32 s{sT+7}, s{sT+7}, 2048")
        a(f"s_add_u32 s{sT+13}, s{sT+8}, s{sT+7}")
        a(f"s_mul_i32 s{sT+7}, s{sT+3}, {PSTR}")
        a(f"s_lshl_b32 s{sT+8}, s{sT+4}, 11")
        a(f"s_add_u32 s{sT+7}, s{sT+7}, s{sT+8}")
        a(f"s_lshl_b32 s{sT+8}, s{sT+2}, 10")
        a(f"s_add_u32 s{sT+7}, s{sT+7}, s{sT+8}")
        a(f"s_add_u32 s{sT+7}, s{sT+7}, {YBUF}")
        a(f"s_mov_b32 s{sT+10}, 7")
        a("v_mov_b32 v10, 0")
        a("v_mov_b32 v11, 1")
        oloads = [(f"buffer_load_dwordx4 {vr(32+4*kb)}, v3, {srd(srdWS)}, s{sT+12+(kb>>1)} offen offset:{OBUF+1024*(kb&1)} {o['pollld']}", 32 + 4 * kb, 4) for kb in range(4)]
        self.oloads = oloads
        def woload(k):
            for e in range(8):
                if e % 4 == 0: a(f"s_add_u32 s{sT+8}, s{sT+6}, {(64*k + e) * 1280}")
                a(f"buffer_load_dwordx4 {vr(64+32*k+4*e)}, v15, {srd(srdWt)}, s{sT+8} offen offset:{(e%4)*1280} {o['wpol']}")
        def woproc(k, gsel, last):
            keepd = [128 + 16 * k + 4 * j for j in range(4)]; give = [216 + 16 * k + 4 * j for j in range(4)]
            dst = keepd + give if gsel == 0 else give + keepd
            gm = range(4, 8) if gsel == 0 else range(4); km = range(4) if gsel == 0 else range(4, 8)
            for j, m in enumerate(gm):
                self.transpose(64 + 32 * k, dst, [m])
                a(f"ds_write_b128 v12, {vr(give[j])} offset:{1024*(4*k+j)}")
            if last:
                a("s_mov_b64 exec, 1")
                a(f"ds_add_u32 v10, v11 offset:{L_SM+60}")
                a("s_mov_b64 exec, -1")
                for l in oloads: a(l[0])
            self.transpose(64 + 32 * k, dst, km)
        if o["oacc"]:
            oloads = oloads[:2]
            ne = o["woearly"]
            if "o" in o["preread"]:
                for l in oloads: a(l[0].replace(o["pollld"], o["prepol"]))
            for k in range(ne):
                woload(k)
                a("s_waitcnt vmcnt(0)")
                self.transpose(64 + 32 * k, [128, 216][k])
            self.ldswait("L_vprogx", L_SM + 36, o["ntrig"], sleep=o["wosleep"])
            for k in range(ne, 2): woload(k)
            a("s_barrier")
            if o["notail"]: a("s_branch L_done")
            a(f"s_cmp_ge_u32 s{sR}, 30")
            a("s_cbranch_scc1 L_odone")
            for k in range(ne, 2):
                if k == 1 and o["oearly"] is not None:
                    a(f"s_waitcnt vmcnt({o['oearly']})")
                    for l in oloads: a(l[0])
                    a("s_waitcnt vmcnt(2)")
                else:
                    a(f"s_waitcnt vmcnt({8*(1-k)})")
                    if k == 1:
                        for l in oloads: a(l[0])
                self.transpose(64 + 32 * k, [128, 216][k])
            self.stamp(6)
            self.mpoll("L_po", oloads, 4, issued=True)
            self.stamp(5)
            a(f"s_cmp_eq_u32 s{sT+2}, 0")
            a("s_cbranch_scc0 L_wo1")
            for gsel in range(2):
                if gsel: a("L_wo1:")
                order = [4, 5, 6, 7, 0, 1, 2, 3] if gsel == 0 else list(range(8))
                keepL = self.L; self.L = []
                self.combineB([64 + 4 * n for n in range(4)], [44 + n for n in range(4)])
                comb = self.L; self.L = keepL
                cnt = 0
                for n, m in enumerate(order):
                    for k in range(2):
                        a(f"v_mfma_f32_16x16x32_bf16 {vr(64+4*n)}, {vr(32+4*k)}, {vr([128, 216][k]+4*m)}, {'0' if k == 0 else vr(64+4*n)}")
                        cnt += 1
                        if cnt >= 10:
                            for _ in range(3 if cnt >= 14 else 2):
                                if comb: a(comb.pop(0))
                for t in comb: a(t)
                if not gsel: a("s_branch L_wo2")
            a("L_wo2:")
            a("ds_write_b128 v12, v[44:47]")
            a("s_mov_b64 exec, 1")
            a(f"ds_add_u32 v10, v11 offset:{L_SM+60}")
            a("s_mov_b64 exec, -1")
            self.combineB([80 + 4 * n for n in range(4)], [48 + n for n in range(4)])
            a(f"s_mov_b32 s{sCnt}, {SPIN*16}")
            a("L_wx:")
            a(f"ds_read_b32 v14, v10 offset:{L_SM+60}")
            a("ds_read_b128 v[52:55], v7")
            a(f"s_sub_u32 s{sCnt}, s{sCnt}, 1")
            a("s_waitcnt lgkmcnt(0)")
            a("s_cbranch_scc1 L_wx_x")
            a("v_cmp_gt_u32 vcc, 2, v14")
            a("s_cbranch_vccnz L_wx")
            a("L_wx_x:")
            for n in range(4): a(f"v_add_f32 v{48+n}, v{48+n}, v{52+n}")
            if o["yloc"] and o["local"]:
                a(f"s_cmp_eq_u32 s{sX}, 0")
                a("s_cbranch_scc1 L_yloc")
            a("L_yglob:")
            a(f"buffer_store_dwordx4 v[48:51], v3, {srd(srdWS)}, s{sT+7} offen sc1")
            self.stamp(9)
            a("s_branch L_odone")
            if o["yloc"] and o["local"]:
                a("L_yloc:")
                a(f"s_cmp_eq_u32 s{sLOC}, 1")
                a("s_cbranch_scc0 L_yglob")
                a(f"buffer_store_dwordx4 v[48:51], v3, {srd(srdWS)}, s{sT+7} offen")
                self.stamp(9)
                a("s_branch L_odone")
        else:
            ne = o["woearly"]
            a(f"s_cmp_eq_u32 s{sT+2}, 0")
            a("s_cbranch_scc0 L_wo1")
            for gsel in range(2):
                if gsel: a("L_wo1:")
                for k in range(ne):
                    woload(k)
                    a("s_waitcnt vmcnt(0)")
                    woproc(k, gsel, False)
                self.ldswait(f"L_vprog{gsel}x", L_SM + 36, o["ntrig"], sleep=o["wosleep"])
                if o["wothr"]:
                    a(f"s_cmp_eq_u32 s{sLOC}, 1")
                    a(f"s_cbranch_scc0 L_wgo{gsel}")
                    a(f"s_lshl_b32 s{sT+14}, s{sX}, 7")
                    a(f"s_add_u32 s{sT+14}, s{sT+14}, {GBUF}")
                    a("v_lshlrev_b32 v9, 2, v0")
                    if gsel == 0:
                        a(f"s_lshl_b64 exec, 1, s{sR}")
                        a(f"buffer_store_dword v10, v9, {srd(srdWS)}, s{sT+14} offen")
                    a("s_mov_b64 exec, 0xffffffff")
                    a(f"buffer_load_dword v13, v9, {srd(srdWS)}, s{sT+14} offen sc1")
                    a("s_waitcnt vmcnt(0)")
                    a("v_cmp_eq_u32 vcc, 0, v13")
                    a("s_mov_b64 exec, -1")
                    a(f"s_bcnt1_i32_b32 s{sT+15}, vcc_lo")
                    a(f"s_cmp_ge_u32 s{sT+15}, {o['wothr']}")
                    a(f"s_cbranch_scc1 L_wgo{gsel}")
                    a("s_barrier")
                    a("s_mov_b64 exec, 0xffffffff")
                    a(f"s_mov_b32 s{sCnt}, 64")
                    a(f"L_wpl{gsel}:")
                    a(f"buffer_load_dword v13, v9, {srd(srdWS)}, s{sT+14} offen sc1")
                    a(f"s_sub_u32 s{sCnt}, s{sCnt}, 1")
                    a("s_waitcnt vmcnt(0)")
                    a(f"s_cbranch_scc1 L_wpx{gsel}")
                    a("v_cmp_eq_u32 vcc, 0, v13")
                    a(f"s_bcnt1_i32_b32 s{sT+15}, vcc_lo")
                    a(f"s_cmp_lt_u32 s{sT+15}, {o['wothr2']}")
                    a(f"s_cbranch_scc1 L_wpl{gsel}")
                    a(f"L_wpx{gsel}:")
                    a("s_mov_b64 exec, -1")
                    for k in range(ne, 2): woload(k)
                    a(f"s_branch L_wjoin{gsel}")
                    a(f"L_wgo{gsel}:")
                for k in range(ne, 2): woload(k)
                a("s_barrier")
                a(f"L_wjoin{gsel}:")
                if o["notail"]: a("s_branch L_done")
                a(f"s_cmp_ge_u32 s{sR}, 30")
                a("s_cbranch_scc1 L_odone")
                for k in range(ne, 2):
                    a(f"s_waitcnt vmcnt({8*(1-k)})")
                    woproc(k, gsel, k == 1)
                if not gsel: a("s_branch L_wo2")
            a("L_wo2:")
            self.ldswait("L_wx", L_SM + 60, 2)
            self.stamp(6)
            a("s_branch L_oproj")
        a("L_b5:")
        self.stamp(6)
        a("s_barrier")
        if o["notail"]: a("s_branch L_done")
        a(f"s_cmp_eq_u32 s{sW}, 7")
        a(f"s_cselect_b32 s{sT+10}, 4, 7")
        a("s_branch L_odone")
        if not o["oacc"]:
            a("L_oproj:")
            for n in range(8): a(f"ds_read_b128 {vr(64+4*n)}, v7 offset:{1024*n}")
            self.mpoll("L_po", oloads, 4, issued=True)
            a("s_waitcnt lgkmcnt(0)")
            if o["stamps"]: self.stamp(5)
            for j in range(4):
                for kb in range(4):
                    c = "0" if kb == 0 else vr(96 + 4 * j)
                    B = (128 if kb < 2 else 64) + 16 * (kb & 1) + 4 * j
                    a(f"v_mfma_f32_16x16x32_bf16 {vr(96+4*j)}, {vr(32+4*kb)}, {vr(B)}, {c}")
                if j >= 2: self.combineB([96 + 4 * (j - 2)], [48 + j - 2])
            self.combineB([104, 108], [50, 51])
            a(f"buffer_store_dwordx4 v[48:51], v3, {srd(srdWS)}, s{sT+7} offen sc1")
            self.stamp(9)
        a("L_odone:")
        a(f"s_cmp_lg_u32 s{sX}, 0")
        a("s_cbranch_scc1 L_done")

    def sec_tail(self):
        a = self.a; o = self.o
        wk0 = o["wk0"]
        a("L_grp0:")
        if o["b5b"]:
            a(f"s_and_b32 s{sT}, s{sW}, 5")
            a(f"s_cmp_eq_u32 s{sT}, 4")
            a("s_cbranch_scc0 L_prep")
            a("s_barrier")
            a(f"s_mov_b32 s{sT+10}, 8")
            a("L_prep:")
        a(f"s_sub_u32 s{sT+11}, s{sR}, {wk0}")
        a(f"s_lshr_b32 s{sT+1}, s{sW}, 2")
        a(f"s_and_b32 s{sT+2}, s{sW}, 3")
        a(f"s_lshl_b32 s{sT+3}, s{sT+1}, 1")
        a(f"s_xor_b32 s{sT+2}, s{sT+2}, s{sT+3}")
        a(f"s_mul_i32 s{sT+16}, s{sT+2}, 3")
        a(f"s_cmp_eq_u32 s{sT+2}, 3")
        a(f"s_cselect_b32 s{sT+16}, 8, s{sT+16}")
        a(f"s_cmp_lt_u32 s{sT+2}, 2")
        a(f"s_cselect_b32 s{sT+17}, 1, 0")
        a(f"s_lshl_b32 s{sT+3}, s{sT+16}, 13")
        a(f"s_lshl_b32 s{sT+4}, s{sT+1}, 12")
        a(f"s_add_u32 s{sT+3}, s{sT+3}, s{sT+4}")
        a(f"s_add_u32 s{sT+3}, s{sT+3}, {L_W}")
        a(f"v_add_u32 v4, s{sT+3}, v3")
        for k in range(2):
            for u in range(4): a(f"ds_read_b128 {vr(216+16*k+4*u)}, v4 offset:{8192*k+1024*u}")
        a(f"s_cmp_eq_u32 s{sT+17}, 0")
        a("s_cbranch_scc1 L_no3a")
        for u in range(4): a(f"ds_read_b128 {vr(160+4*u)}, v4 offset:{16384+1024*u}")
        a("L_no3a:")
        a(f"s_mul_i32 s{sT+2}, s{sT+11}, {PSTR}")
        a(f"s_lshl_b32 s{sT+16}, s{sT+16}, 11")
        a(f"s_add_u32 s{sT+16}, s{sT+16}, s{sT+2}")
        a(f"s_lshl_b32 s{sT+1}, s{sT+1}, 10")
        a(f"s_add_u32 s{sT+16}, s{sT+16}, s{sT+1}")
        a(f"s_add_u32 s{sT+16}, s{sT+16}, {FBUF}")
        a(f"s_add_u32 s{sT+8}, s{sT+16}, 4096")
        self.mksrd(srdOUT, 20, 10240)
        a("v_lshrrev_b32 v6, 3, v0")
        a(f"v_mul_u32_u24 v15, {PSTR}, v6")
        a("v_add_u32 v15, v15, v1")
        a(f"s_mul_i32 s{sT+9}, s{sW}, 2560")
        a(f"s_add_u32 s{sT+9}, s{sT+9}, {HBUF}")
        a("v_lshlrev_b32 v8, 3, v0")
        a("v_bfe_u32 v10, v0, 2, 1")
        a("v_bfe_u32 v11, v0, 3, 1")
        a("v_lshl_add_u32 v10, v10, 1, v11")
        a(f"v_xor_b32 v11, s{sW}, v10")
        a("v_lshlrev_b32 v11, 5, v11")
        a("v_lshl_add_u32 v10, v10, 8, v11")
        a("v_and_b32 v11, 3, v0")
        a("v_lshl_add_u32 v10, v11, 3, v10")
        a("v_lshrrev_b32 v11, 4, v0")
        a("v_lshl_add_u32 v10, v11, 10, v10")
        a("v_bfe_u32 v11, v0, 3, 1")
        a("v_bfe_u32 v16, v0, 4, 1")
        a("v_lshl_add_u32 v11, v11, 1, v16")
        a(f"v_xor_b32 v16, s{sW}, v11")
        a("v_lshlrev_b32 v16, 5, v16")
        a("v_lshl_add_u32 v11, v11, 8, v16")
        a("v_and_b32 v16, 7, v0")
        a("v_lshl_add_u32 v11, v16, 2, v11")
        a("v_lshrrev_b32 v16, 5, v0")
        a("v_lshl_add_u32 v11, v16, 10, v11")
        a("v_lshrrev_b32 v5, 5, v0")
        a("v_bfe_u32 v16, v0, 3, 1")
        a("v_lshl_add_u32 v5, v5, 1, v16")
        a("v_and_b32 v16, 7, v0")
        a(f"v_mul_u32_u24 v7, {SRS}, v16")
        a("v_and_b32 v18, 48, v0")
        a("v_add_u32 v7, v7, v18")
        for k in range(16): a(f"v_mov_b32 v{120+k}, 0")
        a("v_xor_b32 v16, v16, v5")
        a("v_lshlrev_b32 v16, 5, v16")
        a("v_lshl_add_u32 v5, v5, 8, v16")
        a("v_and_b32 v16, 16, v0")
        a("v_add_u32 v5, v5, v16")
        a("v_bfe_u32 v16, v0, 4, 1")
        a("v_lshrrev_b32 v17, 5, v0")
        a("v_lshlrev_b32 v16, 2, v16")
        a("v_lshl_add_u32 v16, v17, 1, v16")
        a("v_bfe_u32 v17, v0, 3, 1")
        a("v_add_u32 v16, v16, v17")
        a(f"v_mul_u32_u24 v16, {SRS}, v16")
        a("v_lshrrev_b32 v17, 3, v1")
        a(f"s_lshl_b32 s{sT+1}, s{sW}, 4")
        a(f"v_add3_u32 v16, v16, v17, s{sT+1}")
        a(f"s_mul_i32 s{sT}, s{sR}, 5")
        a(f"s_add_u32 s{sT}, s{sT}, s{sT+10}")
        a(f"s_lshr_b32 s{sT+1}, s{sT}, 3")
        a(f"s_and_b32 s{sT+2}, s{sT}, 7")
        self.swapbits(sT + 3, sT + 2, sT + 4)
        a(f"s_lshl_b32 s{sT+12}, s{sT}, 7")
        a(f"s_add_u32 s{sT+12}, s{sT+12}, {YBUF}")
        a(f"s_add_u32 s{sT+13}, s{sT+12}, {8*PSTR}")
        a(f"s_add_u32 s{sT+14}, s{sT+12}, {16*PSTR}")
        a(f"s_mul_i32 s{sT+4}, s{sT+3}, 1280")
        a(f"s_lshr_b32 s{sT+5}, s{sT+1}, 1")
        a(f"s_lshl_b32 s{sT+5}, s{sT+5}, 7")
        a(f"s_add_u32 s{sT+4}, s{sT+4}, s{sT+5}")
        a(f"s_and_b32 s{sT+5}, s{sT+1}, 1")
        a(f"s_lshl3_add_u32 s{sT+4}, s{sT+5}, s{sT+4}")
        a("v_lshrrev_b32 v9, 4, v0")
        a("v_lshl_add_u32 v12, v9, 1, v1")
        a(f"v_add_u32 v12, s{sT+4}, v12")
        a("v_lshlrev_b32 v9, 5, v9")
        a("v_lshrrev_b32 v17, 2, v1")
        a("v_add_u32 v9, v9, v17")
        a(f"s_and_b32 s{sT+4}, s{sT}, 1")
        a(f"s_bfe_u32 s{sT+6}, s{sT}, 0x20001")
        a(f"s_lshl2_add_u32 s{sT+4}, s{sT+4}, s{sT+6}")
        a(f"s_lshr_b32 s{sT+6}, s{sT+1}, 1")
        a(f"s_lshl_b32 s{sT+6}, s{sT+6}, 7")
        a(f"s_lshl4_add_u32 s{sT+6}, s{sT+4}, s{sT+6}")
        a(f"s_lshl3_add_u32 s{sT+6}, s{sT+5}, s{sT+6}")
        a("v_and_b32 v17, 7, v0")
        a("v_mul_u32_u24 v18, 1280, v17")
        a("v_lshrrev_b32 v19, 4, v0")
        a("v_lshl_add_u32 v18, v19, 1, v18")
        a(f"v_add_u32 v18, s{sT+6}, v18")
        a(f"s_lshl_b32 s{sT+6}, s{sT+1}, 7")
        a(f"s_lshl2_add_u32 s{sT+6}, s{sT+4}, s{sT+6}")
        a(f"s_add_u32 s{sT+6}, s{sT+6}, {HBUF}")
        a("v_mul_u32_u24 v17, 2560, v17")
        a("v_lshl_add_u32 v19, v19, 5, v17")
        a(f"v_add_u32 v19, s{sT+6}, v19")
        a(f"s_mul_i32 s{sT+15}, s{sT+3}, 2560")
        a(f"s_lshl_b32 s{sT+5}, s{sT+1}, 7")
        a(f"s_add_u32 s{sT+15}, s{sT+15}, s{sT+5}")
        a(f"s_add_u32 s{sT+15}, s{sT+15}, {HBUF}")
        if o["predirty"] and o["local"]:
            a(f"s_cmp_eq_u32 s{sLOC}, 1")
            a("s_cbranch_scc0 L_nopd2")
            for k in range(4): a(f"v_mov_b32 v{20+k}, -1")
            a(f"s_cmp_ge_u32 s{sT+11}, 24")
            a("s_cbranch_scc1 L_nopd1")
            a(f"buffer_store_dwordx4 v[20:23], v3, {srd(srdWS)}, s{sT+16} offen")
            a(f"buffer_store_dwordx4 v[20:23], v3, {srd(srdWS)}, s{sT+16} offen offset:2048")
            a(f"s_cmp_eq_u32 s{sT+17}, 0")
            a("s_cbranch_scc1 L_nopd1")
            a(f"buffer_store_dwordx4 v[20:23], v3, {srd(srdWS)}, s{sT+8} offen")
            a("L_nopd1:")
            a(f"s_cmp_ge_u32 s{sT+10}, 5")
            a("s_cbranch_scc1 L_nopd2")
            a("s_mov_b64 exec, 0xff")
            a(f"buffer_store_dwordx4 v[20:23], v3, {srd(srdWS)}, s{sT+15} offen")
            a("s_mov_b64 exec, -1")
            a("L_nopd2:")
        if "h" in o["preread"]:
            a(f"buffer_load_dwordx4 v[40:43], v3, {srd(srdWS)}, s{sT+9} offen {o['prepol']}")
            a(f"buffer_load_dwordx4 v[44:47], v3, {srd(srdWS)}, s{sT+9} offen offset:1024 {o['prepol']}")
            a(f"buffer_load_dwordx2 v[48:49], v8, {srd(srdWS)}, s{sT+9} offen offset:2048 {o['prepol']}")
        a(f"s_cmp_ge_u32 s{sT+10}, 5")
        a("s_cbranch_scc1 L_nored0")
        if "f" in o["preread"]:
            a(f"v_add_u32 v17, {FBUF-YBUF}, v15")
            for i in range(3): a(f"buffer_load_dwordx4 {vr(76+4*i)}, v17, {srd(srdWS)}, s{sT+12+i} offen {o['prepol']}")
        a(f"buffer_load_ushort v13, v12, {srd(srdX)}, 0 offen")
        yl = [(f"buffer_load_dwordx4 {vr(64+4*i)}, v15, {srd(srdWS)}, s{sT+12+i} offen sc1", 64 + 4 * i, 4) for i in range(3)]
        if o["ypre"]:
            for l in yl: a(l[0])
        if o["b5b"]: a("s_barrier")
        self.mpoll("L_py", yl, 4, issued=o["ypre"])
        self.stamp(10)
        a("v_lshlrev_b32 v13, 16, v13")
        self.reduce24(64, 24)
        a("v_cvt_pk_bf16_f32 v24, 0, v24")
        a("s_mov_b32 exec_lo, 0x00ff00ff")
        a("s_mov_b32 exec_hi, 0x00ff00ff")
        a("v_add_f32 v24, v13, v24")
        a("v_cvt_pk_bf16_f32 v24, 0, v24")
        self.pub("L_pubh", [f"buffer_store_dword v24, v9, {srd(srdWS)}, s{sT+15} offen"])
        a("s_mov_b64 exec, -1")
        for i in range(3): a(f"s_add_u32 s{sT+12+i}, s{sT+12+i}, {FBUF-YBUF}")
        a("L_nored1:")
        if o["b5b"]:
            self.cold += ["L_nored0:", f"s_cmp_eq_u32 s{sT+10}, 8", "s_cbranch_scc1 L_nored1", "s_barrier", "s_branch L_nored1"]
        else:
            a("L_nored0:")
        a(f"s_cmp_ge_u32 s{sT+11}, 24")
        a("s_cbranch_scc1 L_idle")
        pl = o["pollld"]
        keep = self.L; self.L = []
        a("L_idle:")
        a(f"s_cmp_ge_u32 s{sT+10}, 5")
        a("s_cbranch_scc1 L_done")
        self.poll("L_ph2", [f"buffer_load_dword v14, v19, {srd(srdWS)}, 0 offen {pl}"], None, None, cmp="v_cmp_eq_u32 vcc, -1, v14")
        if o["isleep"]: a(f"s_sleep {o['isleep']}")
        a("s_branch L_noffn")
        self.cold += self.L; self.L = keep
        if o["b5c"]: a("s_barrier")
        self.mpoll("L_ph", [(f"buffer_load_dwordx4 v[40:43], v3, {srd(srdWS)}, s{sT+9} offen {pl}", 40, 4),
                            (f"buffer_load_dwordx4 v[44:47], v3, {srd(srdWS)}, s{sT+9} offen offset:1024 {pl}", 44, 4),
                            (f"buffer_load_dwordx2 v[48:49], v8, {srd(srdWS)}, s{sT+9} offen offset:2048 {pl}", 48, 2)], 4)
        self.stamp(11)
        if "F" in o["preread"]:
            a(f"s_cmp_ge_u32 s{sT+10}, 5")
            a("s_cbranch_scc1 L_nopf")
            for i in range(3): a(f"buffer_load_dwordx4 {vr(64+4*i)}, v15, {srd(srdWS)}, s{sT+12+i} offen {o['prepol']}")
            a("L_nopf:")
        self.layernorm()
        if o["fine"]: self.stamp(1)
        a(f"ds_write_b64 v10, v[32:33] offset:{L_XN}")
        a(f"ds_write_b64 v10, v[34:35] offset:{L_XN+4096}")
        a(f"ds_write_b32 v11, v36 offset:{L_XN+8192}")
        a("s_waitcnt lgkmcnt(0)")
        a("s_barrier")
        if o["fine"]: self.stamp(2)
        for kb in range(10): a(f"ds_read_b128 {vr(76+4*kb)}, v5 offset:{L_XN+1024*kb}")
        a(f"buffer_load_dword v14, v19, {srd(srdWS)}, 0 offen {pl}")
        for kb in range(10):
            a(f"s_waitcnt lgkmcnt({9-kb})")
            c = "0" if kb == 0 else "v[116:119]"
            a(f"v_mfma_f32_16x16x32_bf16 v[116:119], {vr(76+4*kb)}, {vr(176+4*kb)}, {c}")
        if o["fine"]: self.stamp(3)
        self.combineB([116], [136])
        a("v_cvt_pk_bf16_f32 v136, 0, v136")
        a(f"v_mul_f32 v137, {hx(f2u(-1.4426950408889634))}, v136")
        a("v_exp_f32 v137, v137")
        a("v_add_f32 v137, 1.0, v137")
        a("v_rcp_f32 v137, v137")
        a("v_mul_f32 v136, v136, v137")
        a("v_cvt_pk_bf16_f32 v136, v136, v136")
        a(f"ds_write_b16 v16, v136 offset:{L_SA}")
        a("s_mov_b32 exec_lo, 0x00ff00ff")
        a("s_mov_b32 exec_hi, 0x00ff00ff")
        a("s_waitcnt lgkmcnt(0)")
        if o["fine"]: self.stamp(4)
        a("s_barrier")
        if o["fine"]: self.stamp(5)
        a(f"ds_read_b128 v[120:123], v7 offset:{L_SA}")
        a(f"ds_read_b128 v[124:127], v7 offset:{L_SA+64}")
        a("s_not_b64 exec, exec")
        a(f"ds_read_b128 v[128:131], v7 offset:{L_SA}")
        a(f"ds_read_b128 v[132:135], v7 offset:{L_SA+64}")
        a("s_mov_b64 exec, -1")
        def chain(acc, fr, wait=False):
            for n in range(4):
                if wait: a(f"s_waitcnt lgkmcnt({3-n})")
                a(f"v_mfma_f32_16x16x32_bf16 {vr(acc)}, {vr(fr+4*n)}, {vr(120+4*n)}, {'0' if n == 0 else vr(acc)}")
        if o["f2il"]:
            def ffn2(pol, tag):
                st = lambda acc, so, off: a(f"buffer_store_dwordx4 {vr(acc)}, v3, {srd(srdWS)}, s{so} offen offset:{off} {pol}".rstrip())
                a(f"s_cmp_eq_u32 s{sT+17}, 0")
                chain(76, 216, True)
                chain(80, 232)
                a(f"s_cbranch_scc1 {tag}")
                for n in range(4):
                    a(f"v_mfma_f32_16x16x32_bf16 v[84:87], {vr(160+4*n)}, {vr(120+4*n)}, {'0' if n == 0 else 'v[84:87]'}")
                    if n == 2: st(76, sT + 16, 0)
                st(80, sT + 16, 2048)
                st(84, sT + 8, 0)
                a("s_branch L_no3c")
                a(f"{tag}:")
                st(76, sT + 16, 0)
                st(80, sT + 16, 2048)
            if o["local"]:
                a(f"s_cmp_eq_u32 s{sLOC}, 1")
                a("s_cbranch_scc0 L_f2g")
                ffn2(o["stpol"], "L_no3b")
                keep = self.L; self.L = []
                a("L_f2g:")
                ffn2("sc1", "L_no3g")
                a("s_branch L_no3c")
                self.cold += self.L; self.L = keep
            else:
                ffn2("sc1", "L_no3b")
        else:
            chain(76, 216, True)
            chain(80, 232)
            a(f"s_cmp_eq_u32 s{sT+17}, 0")
            a("s_cbranch_scc1 L_no3b")
            chain(84, 160)
            self.pub("L_pubi", [f"buffer_store_dwordx4 v[76:79], v3, {srd(srdWS)}, s{sT+16} offen",
                                f"buffer_store_dwordx4 v[80:83], v3, {srd(srdWS)}, s{sT+16} offen offset:2048",
                                f"buffer_store_dwordx4 v[84:87], v3, {srd(srdWS)}, s{sT+8} offen"])
            a("s_branch L_no3c")
            a("L_no3b:")
            self.pub("L_pubf", [f"buffer_store_dwordx4 v[76:79], v3, {srd(srdWS)}, s{sT+16} offen",
                                f"buffer_store_dwordx4 v[80:83], v3, {srd(srdWS)}, s{sT+16} offen offset:2048"])
        a("L_no3c:")
        if o["fine"]: self.stamp(15)
        self.stamp(12)
        if o["wbl2"]:
            a(f"s_cmp_lg_u32 s{sW}, 6")
            a("s_cbranch_scc1 L_noffn")
            a(f"s_cmp_ge_u32 s{sT+11}, {o['wbl2']}")
            a("s_cbranch_scc1 L_noffn")
            a("s_waitcnt vmcnt(0)")
            a("buffer_wbl2 sc1")
        a("L_noffn:")
        a(f"s_cmp_ge_u32 s{sT+10}, 5")
        a("s_cbranch_scc1 L_done")
        self.mpoll("L_pf", [(f"buffer_load_dwordx4 {vr(64+4*i)}, v15, {srd(srdWS)}, s{sT+12+i} offen {pl}", 64 + 4 * i, 4) for i in range(3)], 4)
        self.stamp(13)
        self.reduce24(64, 24)
        a("v_cvt_pk_bf16_f32 v24, 0, v24")
        a("s_mov_b32 exec_lo, 0x00ff00ff")
        a("s_mov_b32 exec_hi, 0x00ff00ff")
        a("v_add_f32 v14, v14, v24")
        a("v_cvt_pk_bf16_f32 v14, v14, v14")
        a(f"buffer_store_short v14, v18, {srd(srdOUT)}, 0 offen")
        a("L_done:")
        if o["hold"]:
            a("L_hold:")
            a(f"s_memrealtime s[{sT}:{sT+1}]")
            a("s_waitcnt lgkmcnt(0)")
            a(f"s_sub_u32 s{sT}, s{sT}, s{sST}")
            a(f"s_cmp_lt_u32 s{sT}, {int(o['hold']*100)}")
            a("s_cbranch_scc1 L_hold")
        if o["stamps"]:
            a("s_mov_b64 exec, -1")
            a("s_waitcnt vmcnt(0)")
            self.stamp(14)
            a(f"s_lshl3_add_u32 s{sT}, s{sR}, s{sX}")
            a(f"s_lshl3_add_u32 s{sT}, s{sT}, s{sW}")
            a(f"s_lshl_b32 s{sT}, s{sT}, 6")
            a(f"s_add_u32 s{sT}, s{sT}, {STAMP}")
            for k in range(16): a(f"v_mov_b32 v{16+k}, s{sST+k}")
            a("v_mov_b32 v4, 0")
            a("s_mov_b64 exec, 1")
            for k in range(4): a(f"buffer_store_dwordx4 {vr(16+4*k)}, v4, {srd(srdWS)}, s{sT} offen offset:{16*k}")
        a("L_end:")
        a("s_endpgm")

    def gen(self):
        a = self.a; o = self.o
        self.sec_start()
        self.sec_h0q()
        self.sec_stream()
        self.sec_h123()
        self.sec_wo()
        self.sec_tail()
        for t in self.cold: a(t)
        a("L_last:")
        a("s_endpgm")
        body, nn = fix_hazards(self.L)
        out = [f"; @launch grid=(256,1,1) block=(512,1,1) lds={LDS_BYTES}",
               '.amdgcn_target "amdgcn-amd-amdhsa--gfx950"', ".text", f".globl {NAME}_kernel"]
        if o["align"]: out += [".p2align 12", ".fill 832, 4, 0xbf810000"]
        out += [".p2align 8", f".type {NAME}_kernel,@function"]
        out += [s if s.endswith(":") else "    " + s for s in body]
        out += ['.section .rodata,"a"', ".p2align 6", f".amdhsa_kernel {NAME}_kernel",
                "  .amdhsa_next_free_vgpr 256", "  .amdhsa_next_free_sgpr 102", "  .amdhsa_accum_offset 256",
                "  .amdhsa_group_segment_fixed_size 0", "  .amdhsa_kernarg_size 88", "  .amdhsa_user_sgpr_count 2",
                "  .amdhsa_user_sgpr_kernarg_segment_ptr 1", "  .amdhsa_system_sgpr_workgroup_id_x 1",
                "  .amdhsa_float_denorm_mode_32 3", ".end_amdhsa_kernel"]
        return "\n".join(out) + "\n"

def gen(**o): return G(**o).gen()

if __name__ == "__main__":
    kw = {}
    for s in sys.argv[2:]:
        k, v = s.split("=", 1)
        try: v = eval(v)
        except Exception: pass
        kw[k] = v
    open(sys.argv[1], "w").write(gen(**kw))
```
